```python
import torch

def _softmax(x, axis=-1):
    return torch.softmax(x, dim=axis)
def _gelu(x):
    return torch.nn.functional.gelu(x, approximate="tanh")
def _silu(x):
    return torch.nn.functional.silu(x)
def _sigmoid(x):
    return torch.sigmoid(x)
def _layernorm(x, axis=-1, eps=1e-5):
    m = x.mean(dim=axis, keepdim=True)
    v = x.var(dim=axis, keepdim=True, unbiased=False)
    return (x - m) / torch.sqrt(v + eps)
def _scatter_add(tgt, idx, src, axis=0):
    return tgt.clone().index_add_(axis, idx, src)
def _segment_sum(src, seg, n):
    out = torch.zeros((n,) + src.shape[1:], dtype=src.dtype)
    return out.index_add_(0, seg, src)
def _pad(x, pw):
    flat = tuple(v for pair in reversed(pw) for v in pair)
    return torch.nn.functional.pad(x, flat)

kernel_name = 'concat_heads__gqa_block_cached__mha_block_cached__near_ridge'

def setup_inputs():

    _w = (lambda a: (lambda t: t.to(torch.bfloat16) if t.is_floating_point() else t)(torch.as_tensor(a)))
    def _A_setup():
        B, Sq, D = 8, 176, 448
        Hq, Hkv, Sk, Dh = 16, 8, 2048, 256
        assert Hq % Hkv == 0, (Hq, Hkv)
        return {
            "x": _w((lambda *s: torch.randn(*s, dtype=torch.bfloat16) * 0.8)(B, Sq, D)),
            "k_cache": _w((lambda *s: torch.randn(*s, dtype=torch.bfloat16) * 0.8)(B, Hkv, Sk, Dh)),
            "v_cache": _w((lambda *s: torch.randn(*s, dtype=torch.bfloat16) * 0.05)(B, Hkv, Sk, Dh)),
            "wq": _w((lambda *s: torch.randn(*s, dtype=torch.bfloat16) * 0.8)(D, Hq * Dh) * (D ** -0.5)),
            "wo": _w((lambda *s: torch.randn(*s, dtype=torch.bfloat16) * 0.05)(Hq * Dh, D) * ((Hq * Dh) ** -0.5)),
        }
    _A_in = _A_setup()

    def _B_setup():
        B, Sq, D = 8, 176, 448
        H, Sk, Dh = 16, 2048, 256
        return {
            "x": _w((lambda *s: torch.randn(*s, dtype=torch.bfloat16) * 0.8)(B, Sq, D)),
            "k_cache": _w((lambda *s: torch.randn(*s, dtype=torch.bfloat16) * 0.8)(B, H, Sk, Dh)),
            "v_cache": _w((lambda *s: torch.randn(*s, dtype=torch.bfloat16) * 0.05)(B, H, Sk, Dh)),
            "wq": _w((lambda *s: torch.randn(*s, dtype=torch.bfloat16) * 0.8)(D, H * Dh) * (D ** -0.5)),
            "wo": _w((lambda *s: torch.randn(*s, dtype=torch.bfloat16) * 0.05)(H * Dh, D) * ((H * Dh) ** -0.5)),
        }
    _B_in = _B_setup()

    return {
        "A_x": _A_in["x"],
        "A_k_cache": _A_in["k_cache"],
        "A_v_cache": _A_in["v_cache"],
        "A_wq": _A_in["wq"],
        "A_wo": _A_in["wo"],
        "B_x": _B_in["x"],
        "B_k_cache": _B_in["k_cache"],
        "B_v_cache": _B_in["v_cache"],
        "B_wq": _B_in["wq"],
        "B_wo": _B_in["wo"],
    }

def reference(A_x, A_k_cache, A_v_cache, A_wq, A_wo, B_x, B_k_cache, B_v_cache, B_wq, B_wo):
    def _A_ref(x, k_cache, v_cache, wq, wo):
        B, Sq, D = x.shape
        Hq, Dh = 16, 256
        Hkv = k_cache.shape[1]
        rep = Hq // Hkv
        q = (lambda x, *d: x.permute(*d))((x @ wq).reshape(B, Sq, Hq, Dh), 0, 2, 1, 3)
        k = (lambda x, n, axis: torch.repeat_interleave(x, n, dim=axis))(k_cache, rep, axis=1)
        v = (lambda x, n, axis: torch.repeat_interleave(x, n, dim=axis))(v_cache, rep, axis=1)
        scores = torch.einsum("bhqd,bhkd->bhqk", q, k) * (Dh ** -0.5)
        p = _softmax(scores, axis=-1)
        o = torch.einsum("bhqk,bhkd->bhqd", p, v)
        return (lambda x, *d: x.permute(*d))(o, 0, 2, 1, 3).reshape(B, Sq, Hq * Dh) @ wo

    def _B_ref(x, k_cache, v_cache, wq, wo):
        B, Sq, D = x.shape
        H, Dh = 16, 256
        q = (lambda x, *d: x.permute(*d))((x @ wq).reshape(B, Sq, H, Dh), 0, 2, 1, 3)
        scores = torch.einsum("bhqd,bhkd->bhqk", q, k_cache) * (Dh ** -0.5)
        p = _softmax(scores, axis=-1)
        o = torch.einsum("bhqk,bhkd->bhqd", p, v_cache)
        return (lambda x, *d: x.permute(*d))(o, 0, 2, 1, 3).reshape(B, Sq, H * Dh) @ wo

    a = _A_ref(A_x, A_k_cache, A_v_cache, A_wq, A_wo)
    b = _B_ref(B_x, B_k_cache, B_v_cache, B_wq, B_wo)
    return torch.concatenate([a, b], axis=-1)
```

```python
import re

TRANS = ("v_exp_f32", "v_log_f32", "v_rcp_f32", "v_rsq_f32", "v_sqrt_f32")

def regs_of(op):
    op = op.strip()
    m = re.fullmatch(r"([vas])\[(\d+):(\d+)\]", op)
    if m:
        return [f"{m.group(1)}{i}" for i in range(int(m.group(2)), int(m.group(3)) + 1)]
    m = re.fullmatch(r"-?([vas])(\d+)", op)
    if m:
        return [f"{m.group(1)}{m.group(2)}"]
    if op in ("m0", "vcc", "exec", "scc"):
        return [op]
    if op in ("vcc_lo", "vcc_hi"):
        return ["vcc"]
    return []

class Ins:
    __slots__ = ("text", "kind", "dst", "src", "tag", "targets", "count", "cost", "srcC", "ab", "cnt")
    def __init__(self, text, tag=None, targets=None, cnt=None):
        self.text = text
        self.tag = tag
        self.targets = targets
        self.cnt = cnt
        self.count = None
        self.srcC = []
        self.ab = []
        self.classify()
    def classify(self):
        t = self.text.split(";")[0].strip()
        self.dst = []; self.src = []; self.cost = 1
        if self.cnt is not None:
            self.kind = "waitm"; return
        if t.endswith(":") or t == "" or t.startswith("."):
            self.kind = "label"; self.cost = 0; return
        parts = t.split(None, 1)
        op = parts[0]
        ops = []
        if len(parts) > 1:
            ops = [x.strip() for x in re.split(r",(?![^\[]*\])", parts[1])]
            if ops:
                last = ops[-1].split()
                ops[-1] = last[0]
                mods = last[1:]
            else:
                mods = []
        else:
            mods = []
        base = op.replace("_e64", "").replace("_e32", "")
        if base.startswith("v_mfma"):
            self.kind = "mfma"
            self.dst = regs_of(ops[0]); self.ab = regs_of(ops[1]) + regs_of(ops[2]); self.srcC = regs_of(ops[3])
            self.src = self.ab + self.srcC
        elif base.startswith("ds_read"):
            self.kind = "ds"; self.dst = regs_of(ops[0]); self.src = regs_of(ops[1])
        elif base.startswith("ds_write"):
            self.kind = "ds"; self.src = regs_of(ops[0]) + regs_of(ops[1])
        elif base.startswith("buffer_load"):
            self.kind = "vmem"
            if "lds" in mods:
                self.src = regs_of(ops[0]) + regs_of(ops[1]) + regs_of(ops[2]) + ["m0"]
                self.kind = "dma"
            else:
                self.dst = regs_of(ops[0]); self.src = regs_of(ops[1]) + regs_of(ops[2]) + regs_of(ops[3])
        elif base.startswith("buffer_store") or base.startswith("buffer_atomic"):
            self.kind = "vmem"; self.src = sum((regs_of(o) for o in ops), [])
        elif base.startswith("v_"):
            self.kind = "trans" if base in TRANS else "valu"
            if self.kind == "trans": self.cost = 2
            if base.startswith("v_cmp"):
                self.dst = regs_of(ops[0]); self.src = sum((regs_of(o) for o in ops[1:]), [])
            elif base.startswith("v_permlane") and "swap" in base:
                self.dst = regs_of(ops[0]) + regs_of(ops[1]); self.src = list(self.dst); self.kind = "perm"
            elif base in ("v_readfirstlane_b32", "v_readlane_b32"):
                self.dst = regs_of(ops[0]); self.src = sum((regs_of(o) for o in ops[1:]), []); self.kind = "rfl"
            elif base == "v_nop":
                pass
            else:
                self.dst = regs_of(ops[0]); self.src = sum((regs_of(o) for o in ops[1:]), [])
                if base in ("v_cndmask_b32",) and len(ops) == 3: self.src.append("vcc")
                if base.startswith("v_fmac"): self.src += self.dst
        elif base.startswith("s_"):
            self.kind = "salu"
            if base == "s_nop":
                self.kind = "nop"; self.count = int(ops[0], 0) + 1
            elif base == "s_waitcnt":
                self.kind = "wait"
            elif base == "s_barrier":
                self.kind = "barrier"
            elif base.startswith("s_load") or base in ("s_memtime", "s_memrealtime"):
                self.kind = "smem"; self.dst = regs_of(ops[0]); self.src = sum((regs_of(o) for o in ops[1:]), [])
            elif base.startswith("s_cbranch") or base in ("s_branch", "s_endpgm", "s_setprio", "s_sleep"):
                self.kind = "ctl"
            elif base.startswith("s_cmp"):
                self.src = sum((regs_of(o) for o in ops), [])
            else:
                self.dst = regs_of(ops[0]); self.src = sum((regs_of(o) for o in ops[1:]), [])
        else:
            raise ValueError("unknown instruction: " + self.text)
    def render(self):
        if self.kind == "waitm":
            if self.count is None:
                return None
            lim = 15 if self.cnt == "lgkm" else 63
            c = min(self.count, lim)
            return f"s_waitcnt {'lgkmcnt' if self.cnt == 'lgkm' else 'vmcnt'}({c})"
        return self.text

def I(text, tag=None):
    return Ins(text, tag=tag)
def WL(*targets):
    return Ins("", targets=list(targets), cnt="lgkm")
def WV(*targets):
    return Ins("", targets=list(targets), cnt="vm")

def keep_last(q, n):
    return q[max(0, len(q) - n):] if n else []

def abs_tag(tag, base):
    if tag is None: return None
    k, rel, sc = tag
    return (k, rel + base * sc)

def resolve_waits(trace):
    lg = []; vm = []
    for blk, base in trace:
        for ins in blk:
            if ins.kind == "ds":
                lg.append(abs_tag(ins.tag, base))
            elif ins.kind in ("vmem", "dma"):
                vm.append(abs_tag(ins.tag, base))
            elif ins.kind == "wait":
                m = re.search(r"lgkmcnt\((\d+)\)", ins.text)
                if m: lg = keep_last(lg, int(m.group(1)))
                m = re.search(r"vmcnt\((\d+)\)", ins.text)
                if m: vm = keep_last(vm, int(m.group(1)))
            elif ins.kind == "waitm":
                q = lg if ins.cnt == "lgkm" else vm
                tg = set(abs_tag(t, base) for t in ins.targets)
                idx = [i for i, t in enumerate(q) if t in tg]
                if idx:
                    c = len(q) - 1 - idx[-1]
                    ins.count = c if ins.count is None else min(ins.count, c)

def check_trace(trace, name=""):
    errs = []
    seq = []
    for blk, base in trace:
        for ins in blk:
            if ins.kind == "label": continue
            if ins.kind == "waitm" and ins.count is None: continue
            seq.append(ins)
    pos = 0
    last = {}
    pend_lg = []; pend_vm = []
    def need(cls, regs, n, ins, what):
        for r in regs:
            p = last.get((cls, r))
            if p is not None and pos - p - 1 < n:
                errs.append(f"{name}: {what} on {r}: dist {pos-p-1} < {n} at '{ins.render()}'")
    for ins in seq:
        k = ins.kind
        rw = set(ins.src) | set(ins.dst)
        if k not in ("wait", "waitm"):
            for q, nm in ((pend_lg, "lgkm"), (pend_vm, "vm")):
                for d in q:
                    hit = d & rw
                    if hit:
                        errs.append(f"{name}: use of pending {nm} reg {sorted(hit)[:2]} at '{ins.render()}'")
        if k == "mfma":
            need("valu_w", ins.src, 2, ins, "VALU->MFMA")
            need("mfma_w", ins.ab, 8, ins, "MFMA D->MFMA AB")
            for r in ins.srcC:
                p = last.get(("mfma_w", r))
                if p is not None and pos - p - 1 < 6 and last.get(("mfma_dset", r)) != tuple(ins.srcC):
                    errs.append(f"{name}: MFMA D->SrcC partial at '{ins.render()}'")
            need("exec_w", ["exec"], 4, ins, "exec->mfma")
        elif k in ("valu", "trans", "perm", "rfl"):
            need("mfma_w", rw, 8, ins, "MFMA D->VALU")
            need("mfma_c", ins.dst, 3, ins, "MFMA SrcC WAR")
            if k != "trans":
                need("trans_w", ins.src, 1, ins, "trans->VALU")
            need("valu_sw", [r for r in ins.src if r[0] == "s" or r == "vcc"], 2, ins, "VALU sgpr->VALU")
            if k == "perm": need("valu_w", ins.src, 2, ins, "VALU->permlane")
            if k == "rfl": need("valu_w", ins.src, 1, ins, "VALU->readlane")
            need("st_data", ins.dst, 2, ins, "store data WAR")
        elif k in ("ds", "vmem", "dma"):
            need("mfma_w", rw, 8, ins, "MFMA D->mem")
            need("valu_sw", [r for r in ins.src if r[0] == "s"], 5, ins, "VALU sgpr->VMEM")
            if k == "dma": need("m0_w", ["m0"], 1, ins, "m0->dma")
            need("st_data", ins.dst, 1, ins, "store data WAR")
        if k == "mfma":
            for r in ins.dst:
                last[("mfma_w", r)] = pos; last[("mfma_dset", r)] = tuple(ins.dst)
            for r in ins.srcC: last[("mfma_c", r)] = pos
        elif k in ("valu", "trans", "perm", "rfl"):
            for r in ins.dst:
                if r[0] in "va": last[("valu_w", r)] = pos
                else: last[("valu_sw", r)] = pos
                if k == "trans": last[("trans_w", r)] = pos
                else: last.pop(("trans_w", r), None)
                last.pop(("mfma_w", r), None)
            if "exec" in ins.dst: last[("exec_w", "exec")] = pos
        elif k == "salu":
            if "m0" in ins.dst: last[("m0_w", "m0")] = pos
        elif k == "ds":
            pend_lg.append(set(ins.dst))
        elif k == "smem":
            pend_lg.append(set(ins.dst)); pend_lg.append(set(ins.dst))
        elif k in ("vmem", "dma"):
            pend_vm.append(set(ins.dst))
            if ins.text.startswith("buffer_store_dwordx4") or ins.text.startswith("buffer_store_dwordx3"):
                for r in ins.src[:4]: last[("st_data", r)] = pos
        elif k in ("wait", "waitm"):
            t = ins.render()
            m = re.search(r"lgkmcnt\((\d+)\)", t)
            if m:
                pend_lg = keep_last(pend_lg, int(m.group(1)))
            m = re.search(r"vmcnt\((\d+)\)", t)
            if m:
                pend_vm = keep_last(pend_vm, int(m.group(1)))
        pos += ins.count if k == "nop" else 1
    return errs

def render(blocks):
    out = []
    for blk in blocks:
        for ins in blk:
            r = ins.render()
            if r is None: continue
            out.append(r if ins.kind == "label" else "  " + r)
    return "\n".join(out) + "\n"


class Sched:
    def __init__(self, backbone, cap=2):
        self.bb = backbone
        self.n = len(backbone)
        self.cap = cap
        self.gaps = {i: [] for i in range(-1, self.n)}
        self.tail = {i: [] for i in range(-1, self.n)}
    def load(self, g):
        return sum(x.cost for x in self.gaps[g]) + sum(x.cost for x in self.tail[g])
    def pin(self, g, ins, last=False):
        g = max(-1, min(self.n - 1, g))
        (self.tail if last else self.gaps)[g].append(ins)
        return g
    def place(self, ins, want, lo, hi, cap=None):
        cap = cap or self.cap
        lo = max(lo, -1); hi = min(hi, self.n - 1)
        want = max(lo, min(hi, int(want)))
        for extra in range(0, 8):
            cands = sorted(range(lo, hi + 1), key=lambda g: (abs(g - want), g < want))
            for g in cands:
                if self.load(g) + ins.cost <= cap + extra:
                    self.gaps[g].append(ins)
                    return g
        raise RuntimeError("no room")
    def emit(self):
        out = list(self.gaps[-1]) + list(self.tail[-1])
        for i, m in enumerate(self.bb):
            out.append(m); out += self.gaps[i]; out += self.tail[i]
        return out
    def loads(self):
        return [self.load(g) for g in range(-1, self.n)]
```

```python
from asmlib import *
MFMA = "v_mfma_f32_16x16x32_bf16"
def r4(p, b): return f"{p}[{b}:{b+3}]"
NQ = 5
SOo, SWo, SOut = 4, 8, 12
sWave, sKo, sKw, sIt, sM0, sTmp = 24, 25, 26, 27, 28, 29
sR, sRot, sT2 = 30, 31, 23
vD = [0, 1, 2, 3]; vT = [4, 5, 6, 7]; vO = [8, 9, 10, 11, 12]
vR = [13, 14, 15]; vSt = [16, 17, 18, 19, 20]; vWr = 21
ACC0 = 32; AF0 = 112; RD0 = 144
STAMP0 = 70
def acc(qt, t): return ACC0 + (t * NQ + qt) * 4
def af(buf, t): return AF0 + (buf * 4 + t) * 4
def ob(slot, qt): return (slot * NQ + qt) * 4

def k2(cfg, name):
    P = cfg.get("k2P", 6)
    ont = {0: "", 1: " nt", 2: " sc1"}[cfg.get("k2ont", 0)]
    wnt = " nt" if cfg.get("k2wnt", 0) else ""
    stamps = cfg.get("stamps")
    inter = cfg.get("k2inter", 0)
    W = cfg.get("k2W", 1)
    ra, rb = cfg.get("k2rot", [0, 0])
    kso = 4096 if inter else 1024
    wso = 1024 if inter else 32768
    def stamp(i): return [I(f"s_memtime s[{STAMP0+2*i}:{STAMP0+2*i+1}]")] if stamps else []
    h = [I(f"{name}:")]; A = h.append
    A(I("s_cmp_ge_u32 s2, 256")); A(I("s_cbranch_scc1 K2_END"))
    h += stamp(0)
    if stamps: A(I(f"s_memrealtime s[{STAMP0+20}:{STAMP0+21}]"))
    A(I("s_load_dwordx2 s[32:33], s[0:1], 32"))
    A(I("s_load_dwordx4 s[36:39], s[0:1], 72"))
    A(I("s_load_dwordx2 s[40:41], s[0:1], 96"))
    A(I("s_and_b32 s54, s2, 7")); A(I("s_lshr_b32 s55, s2, 3"))
    A(I("s_lshr_b32 s58, s54, 2"))
    A(I("s_and_b32 s54, s54, 3")); A(I("s_lshl_b32 s54, s54, 5")); A(I("s_add_u32 s54, s54, s55"))
    A(I("s_cmp_ge_u32 s54, 126")); A(I("s_cbranch_scc1 K2_END"))
    A(I("s_mul_i32 s56, s54, 147")); A(I("s_lshr_b32 s56, s56, 10"))
    A(I("s_mul_i32 s57, s56, 7")); A(I("s_sub_u32 s57, s54, s57"))
    A(I("v_lshrrev_b32 v30, 6, v0")); A(I("v_and_b32 v31, 63, v0"))
    A(I(f"v_readfirstlane_b32 s{sWave}, v30"))
    A(I("v_lshrrev_b32 v22, 3, v31")); A(I("v_and_b32 v23, 7, v31")); A(I("v_and_b32 v24, 6, v22"))
    A(I("v_xor_b32 v23, v23, v24")); A(I("v_lshlrev_b32 v23, 4, v23"))
    A(I("v_mul_u32_u24 v22, 0x380, v22")); A(I(f"v_add_u32 v{vD[0]}, v22, v23"))
    for j in range(1, 4): A(I(f"v_add_u32 v{vD[j]}, {6144*j}, v{vD[0]}"))
    A(I(f"v_lshlrev_b32 v{vO[0]}, 4, v31"))
    for q in range(1, NQ): A(I(f"v_add_u32 v{vO[q]}, {131072*q}, v{vO[0]}"))
    A(I(f"s_lshl_b32 s{sM0}, s{sWave}, 15"))
    A(I("s_mul_i32 s59, s58, 88")); A(I("s_mul_i32 s60, s56, 5")); A(I("s_add_u32 s59, s59, s60"))
    A(I(f"s_mul_i32 s65, s{sWave}, {wso}"))
    A(I("s_lshl_b32 s59, s59, 17")); A(I(f"s_add_u32 s59, s59, s65"))
    A(I("s_sub_u32 s60, 88, s60")); A(I("s_lshl_b32 s60, s60, 17")); A(I(f"s_sub_u32 s{SOo+2}, s60, s65"))
    A(I(f"s_mul_i32 s{sRot}, s57, {ra}")); A(I(f"s_mul_i32 s66, s56, {rb}")); A(I(f"s_add_u32 s{sRot}, s{sRot}, s66"))
    A(I(f"s_mul_i32 s61, s{sWave}, {wso*28}")); A(I("s_lshl_b32 s62, s57, 7")); A(I("s_add_u32 s61, s61, s62"))
    A(I(f"s_sub_u32 s{SWo+2}, {4096*896}, s61"))
    A(I(f"s_mov_b32 s{SOo+3}, 0x20000")); A(I(f"s_mov_b32 s{SWo+3}, 0x20000")); A(I(f"s_mov_b32 s{SOut+3}, 0x20000"))
    A(I(f"s_mul_i32 s63, s56, {80*1792}")); A(I("s_mul_i32 s64, s58, 896")); A(I("s_add_u32 s63, s63, s64")); A(I("s_add_u32 s63, s63, s62"))
    A(I(f"s_sub_u32 s{SOut+2}, {1408*1792}, s63"))
    A(I("s_waitcnt lgkmcnt(0)"))
    A(I(f"s_add_u32 s{SOo}, s40, s59")); A(I(f"s_addc_u32 s{SOo+1}, s41, 0"))
    A(I("s_cmp_eq_u32 s58, 0")); A(I(f"s_cselect_b64 s[{SWo}:{SWo+1}], s[32:33], s[36:37]"))
    A(I(f"s_add_u32 s{SWo}, s{SWo}, s61")); A(I(f"s_addc_u32 s{SWo+1}, s{SWo+1}, 0"))
    A(I(f"s_add_u32 s{SOut}, s38, s63")); A(I(f"s_addc_u32 s{SOut+1}, s39, 0"))
    def calc():
        return [I(f"s_add_u32 s{sKo}, s{sR}, s{sRot}"), I(f"s_and_b32 s{sKo}, s{sKo}, {W-1}"),
                I(f"s_andn2_b32 s{sT2}, s{sR}, {W-1}"), I(f"s_or_b32 s{sKo}, s{sKo}, s{sT2}"),
                I(f"s_mul_i32 s{sKw}, s{sKo}, {kso*28}"), I(f"s_mul_i32 s{sKo}, s{sKo}, {kso}")]
    A(I(f"s_mov_b32 s{sR}, 0"))
    h += calc()
    def loads(slot, rel):
        sal = [I(f"s_add_u32 m0, s{sM0}, {slot*4096}")]
        ld = []
        for j in range(4):
            o = f" offset:{1024*j}" if j else ""
            ld.append(I(f"buffer_load_dwordx4 v{vD[j]}, s[{SWo}:{SWo+3}], s{sKw} offen{o}{wnt} lds", ("W", rel, 1)))
        for q in range(NQ):
            ld.append(I(f"buffer_load_dwordx4 {r4('a', ob(slot, q))}, v{vO[q]}, s[{SOo}:{SOo+3}], s{sKo} offen{ont}", ("O", rel, 1)))
        for x in ld: x.cost = 2
        adv = [I(f"s_add_u32 s{sR}, s{sR}, 1")] + calc()
        return sal, ld, adv
    for s in range(P):
        sal, ld, adv = loads(s, s)
        h += sal + [I("s_nop 0")] + ld + adv
    h += stamp(1)
    A(I("v_lshrrev_b32 v22, 4, v31")); A(I("v_and_b32 v23, 15, v31"))
    A(I("v_lshrrev_b32 v24, 2, v23")); A(I("v_lshl_add_u32 v24, v22, 2, v24"))
    A(I("v_and_b32 v25, 3, v23"))
    A(I("v_bfe_u32 v26, v24, 1, 2"))
    A(I("v_lshlrev_b32 v24, 7, v24")); A(I("v_lshl_add_u32 v24, v25, 3, v24"))
    A(I(f"v_add_u32 v24, s{sM0}, v24"))
    for t in range(4):
        A(I(f"v_add_u32 v27, {t}, v30")); A(I("v_and_b32 v27, 3, v27"))
        A(I("v_xor_b32 v27, v27, v26")); A(I(f"v_lshl_add_u32 v{vT[t]}, v27, 5, v24"))
    for t in range(1, 4):
        A(I(f"v_subrev_u32 v27, {t}, v30")); A(I("v_and_b32 v27, 3, v27")); A(I("v_lshlrev_b32 v27, 15, v27"))
        A(I(f"v_add_u32 v27, {(t-1)*5120}, v27")); A(I(f"v_add_u32 v{vR[t-1]}, v27, v{vO[0]}"))
    A(I(f"v_add_u32 v{vWr}, s{sM0}, v{vO[0]}"))
    A(I("v_mul_u32_u24 v27, 0x700, v23")); A(I("v_lshl_add_u32 v27, v30, 5, v27")); A(I(f"v_lshl_add_u32 v{vSt[0]}, v22, 3, v27"))
    for q in range(1, NQ): A(I(f"v_add_u32 v{vSt[q]}, {28672*q}, v{vSt[0]}"))
    for i in range(80): A(I(f"v_mov_b32 v{ACC0+i}, 0"))
    A(I(f"s_mov_b32 s{sIt}, 0"))
    def areads(slot, buf, rel):
        o = []
        for t in range(4):
            b = af(buf, t)
            o.append(I(f"ds_read_b64_tr_b16 v[{b}:{b+1}], v{vT[t]} offset:{slot*4096}", ("A", rel, 1)))
            o.append(I(f"ds_read_b64_tr_b16 v[{b+2}:{b+3}], v{vT[t]} offset:{slot*4096+2048}", ("A", rel, 1)))
        return o
    h += [WV(("W", 0, 1))] + areads(0, 0, 0)
    h += stamp(2)
    body = []
    for p in range(8):
        bb = []
        for t in range(4):
            for q in range(NQ):
                d = r4("v", acc(q, t))
                bb.append(I(f"{MFMA} {d}, {r4('v', af(p & 1, t))}, {r4('a', ob(p, q))}, {d}"))
        sch = Sched(bb, cap=2)
        if p == 0: sch.pin(-1, I("K2_LOOP:"))
        sch.pin(-1, WV(("W", 1, 1), ("O", 0, 1)))
        sch.pin(-1, WL(("A", 0, 1)))
        rd = areads((p + 1) & 7, (p + 1) & 1, 1)
        for i, x in enumerate(rd): sch.pin(i // 2, x)
        sal, ld, adv = loads((p + P) & 7, P)
        if p == 8 - P:
            sal = [I(f"s_cmp_eq_u32 s{sIt}, 3"), I(f"s_cselect_b32 s{SOo+2}, 0, s{SOo+2}"), I(f"s_cselect_b32 s{SWo+2}, 0, s{SWo+2}")] + sal
        for x in sal: sch.pin(4, x)
        for i, x in enumerate(ld): sch.pin(5 + i, x)
        for i, x in enumerate(adv): sch.pin(14 + i // 2, x)
        if p == 7:
            sch.pin(18, I(f"s_add_u32 s{sIt}, s{sIt}, 1"))
            sch.pin(19, I(f"s_cmp_lt_u32 s{sIt}, 4"), last=True)
            sch.pin(19, I("s_cbranch_scc1 K2_LOOP"), last=True)
        body.append(sch.emit())
    e = stamp(3) + [I("s_waitcnt vmcnt(0) lgkmcnt(0)"), I("s_nop 4")]
    for t in range(1, 4):
        for q in range(NQ):
            e.append(I(f"ds_write_b128 v{vWr}, {r4('v', acc(q, t))} offset:{(t-1)*5120 + q*1024}"))
    e += [I("s_waitcnt lgkmcnt(0)"), I("s_barrier")]
    for q in range(NQ):
        for t in range(1, 4):
            e.append(I(f"ds_read_b128 {r4('v', RD0 + (q*3+t-1)*4)}, v{vR[t-1]} offset:{q*1024}", ("R", q, 0)))
    for q in range(NQ):
        e.append(WL(("R", q, 0)))
        a = acc(q, 0); r = RD0 + q * 12
        for i in range(4): e.append(I(f"v_add_f32 v{a+i}, v{a+i}, v{r+i}"))
        for i in range(4): e.append(I(f"v_add_f32 v{r+4+i}, v{r+4+i}, v{r+8+i}"))
        for i in range(4): e.append(I(f"v_add_f32 v{a+i}, v{a+i}, v{r+4+i}"))
        e.append(I(f"v_cvt_pk_bf16_f32 v{r}, v{a}, v{a+1}")); e.append(I(f"v_cvt_pk_bf16_f32 v{r+1}, v{a+2}, v{a+3}"))
        e.append(I(f"buffer_store_dwordx2 v[{r}:{r+1}], v{vSt[q]}, s[{SOut}:{SOut+3}], 0 offen"))
    if stamps:
        e += stamp(4)
        e.append(I("s_waitcnt vmcnt(0)"))
        for i in range(5, 10): e += stamp(i)
        e.append(I(f"s_memrealtime s[{STAMP0+22}:{STAMP0+23}]"))
        e.append(I("s_waitcnt lgkmcnt(0)"))
        n = 12
        e.append(I(f"s_lshl_b32 s{sTmp}, s2, 2")); e.append(I(f"s_add_u32 s{sTmp}, s{sTmp}, s{sWave}"))
        e.append(I(f"s_mul_i32 s{sTmp}, s{sTmp}, {n*4}"))
        e.append(I(f"s_add_u32 s{SOo}, s40, 0x10100000")); e.append(I(f"s_addc_u32 s{SOo+1}, s41, 0"))
        e.append(I(f"s_mov_b32 s{SOo+2}, 0x100000"))
        e.append(I("v_mov_b32 v22, 0"))
        for i in range(n):
            e.append(I(f"v_mov_b32 v{ACC0+i}, s{STAMP0+2*i}"))
            e.append(I(f"buffer_store_dword v{ACC0+i}, v22, s[{SOo}:{SOo+3}], s{sTmp} offen offset:{4*i}"))
    e += [I("K2_END:"), I("s_endpgm")]
    trace = [(h, 0)]
    s = 0
    for it in range(4):
        for blk in body:
            trace.append((blk, s)); s += 1
    trace.append((e, 0))
    resolve_waits(trace)
    errs = check_trace(trace, "K2")
    return render([h] + body + [e]), errs, dict(grid=256, lds=131072, vgpr=368, accum=208)
```

```python
import sys, math, json
from asmlib import *

NAME = "concat_heads__gqa_block_cached__mha_block_cached__near_ridge"
K1 = NAME + "_kernel"
K2 = "oproj_kernel"

DEF = dict(
    D=5, R=8, G=1,
    dmaA=["K"],
    dmaB=[("V", 0), ("V", 1), ("V", 2), ("V", 3), ("K", 3)],
    dma_off=1, dma_strideA=1, dma_strideB=1,
    nt=False, map=2, stamps=False, touch=0, capB=4,
    k2=True,
)

vKb = [0, 1, 2, 3]; vVb = list(range(4, 12)); vD = [12, 13, 14, 15]
Q0 = 16; S0 = 112; P0 = 136; NM0 = 160; L0 = 172; ONES = 184; TMP = 188
vWb = [16, 17, 18, 19]; vWD = [20, 21, 22, 23]; vX = 24; vTouch = 25; vTouchD = 26
ACC0 = 64
FR0 = 192
def Qr(qt, ks): b = Q0 + qt * 32 + ks * 4; return f"v[{b}:{b+3}]"
def Sr(qt, kt): return S0 + (qt * 2 + kt) * 4
def Pr(buf, qt): return P0 + (buf * 3 + qt) * 4
def NMr(qt): return NM0 + qt * 4
def Lr(qt): return L0 + qt * 4
def Or(qt, T): return (qt * 16 + T) * 4
def Xr(s, qt): return (s * 3 + qt) * 4
def ACCr(qt, T): return ACC0 + (qt * 16 + T) * 4
def r4(p, b): return f"{p}[{b}:{b+3}]"
SK, SV, SW, SX, SO = 4, 8, 12, 16, 20
sWave, sU, sT, sLim, sTmp, sWoff, sRetry, sQt = 24, 25, 26, 27, 28, 29, 30, 31
sX1, sX2 = 60, 61
sO0 = 62
sCnt = 65
sFlag = 66
STAMP0 = 70
VBASE = 65536; WBASE = 98304; FLAGS = 131072
MFMA = "v_mfma_f32_16x16x32_bf16"
LOG2E_16 = 1.4426950408889634 / 16.0
import struct
def f2u(f): return struct.unpack("<I", struct.pack("<f", f))[0]

class Gen:
    def __init__(self, cfg):
        self.c = cfg
        self.nstamp = 0
    def stamp(self, i, q=False):
        if not self.c["stamps"]: return []
        if self.c.get("qst") and i >= 3 and not q: return []
        if q and not self.c.get("qst"): return []
        return [I(f"s_memtime s[{STAMP0+2*i}:{STAMP0+2*i+1}]")]
    def frag_reads(self, kind, slot, idx, pos, tagidx):
        b = FR0 + (pos % self.c["R"]) * 4
        tag = ("F", tagidx, 64)
        if kind == "K":
            kt, ks = idx >> 3, idx & 7
            off = slot * 16384 + kt * 8192 + (ks >> 2) * 256
            return [I(f"ds_read_b128 a[{b}:{b+3}], v{vKb[ks & 3]} offset:{off}", tag)]
        if kind == "V":
            off = slot * 16384 + (idx >> 3) * 256
            return [I(f"ds_read_b64_tr_b16 a[{b}:{b+1}], v{vVb[idx & 7]} offset:{off}", tag),
                    I(f"ds_read_b64_tr_b16 a[{b+2}:{b+3}], v{vVb[idx & 7]} offset:{off+8192}", tag)]
        if kind == "W":
            ks, par = idx >> 1, idx & 1
            off = slot * 16384 + (ks >> 2) * 256 + par * 8
            return [I(f"ds_read_b64_tr_b16 a[{b}:{b+1}], v{vWb[ks & 3]} offset:{off}", tag),
                    I(f"ds_read_b64_tr_b16 a[{b+2}:{b+3}], v{vWb[ks & 3]} offset:{off+8192}", tag)]
    def fbuf(self, pos):
        b = FR0 + (pos % self.c["R"]) * 4
        return f"a[{b}:{b+3}]"
    def dma_group(self, wt, kind, u, slot, rel_tile, tag, static=False, clamp=False):
        nt = " nt" if self.c["nt"] else ""
        ldsb = (0 if kind == "K" else VBASE) + slot * 16384
        srd = SK if kind == "K" else SV
        sal = []
        if wt == "A":
            sal.append(I(f"s_add_u32 m0, s{sU}, {ldsb}"))
            if static: sal.append(I(f"s_add_u32 s{sTmp}, s{sU}, {rel_tile*16384}"))
            else: sal.append(I(f"s_add_u32 s{sTmp}, s{sT}, {rel_tile*16384}"))
            if clamp: sal.append(I(f"s_min_u32 s{sTmp}, s{sTmp}, s{sLim}"))
        else:
            sal.append(I(f"s_mov_b32 m0, {ldsb + 4096*u}"))
            if static: sal.append(I(f"s_mov_b32 s{sTmp}, {rel_tile*16384 + 4096*u}"))
            else: sal.append(I(f"s_add_u32 s{sTmp}, s{sT}, {rel_tile*16384 + 4096*u}"))
            if clamp: sal.append(I(f"s_min_u32 s{sTmp}, s{sTmp}, {63*16384 + 4096*u}"))
        dm = []
        for j in range(4):
            o = f" offset:{1024*j}" if j else ""
            x = I(f"buffer_load_dwordx4 v{vD[j]}, s[{srd}:{srd+3}], s{sTmp} offen{o}{nt} lds", tag)
            x.cost = 2
            dm.append(x)
        return sal, dm
    def groups_for(self, wt, kind):
        if wt == "A": return [None] * self.c["dmaA"].count(kind)
        return [u for k, u in self.c["dmaB"] if k == kind]
    def tile_dma(self, wt, kind, slot, rel_tile, tag, static=False, clamp=False):
        out = []
        for u in self.groups_for(wt, kind):
            out.append(self.dma_group(wt, kind, u, slot, rel_tile, tag, static, clamp))
        return out
    def w_dma(self, s):
        sal = [I(f"s_add_u32 m0, s{sU}, {WBASE + (s & 3)*16384}"),
               I(f"s_add_u32 s{sTmp}, s{sWoff}, {s*262144}")]
        dm = []
        for j in range(4):
            o = f" offset:{1024*j}" if j else ""
            x = I(f"buffer_load_dwordx4 v{vWD[j]}, s[{SW}:{SW+3}], s{sTmp} offen{o} lds", ("W", s, 0))
            x.cost = 2
            dm.append(x)
        return sal, dm
    def x_loads(self, s, NQ):
        out = []
        for qt in range(NQ):
            so = "0" if qt == 0 else f"s{sX1 + qt - 1}"
            x = I(f"buffer_load_dwordx4 {r4('a', Xr(s, qt))}, v{vX}, s[{SX}:{SX+3}], {so} offen offset:{s*64}", ("X", s, 0))
            x.cost = 2
            out.append(x)
        return out
    def pin_seq(self, sch, g0, stride, groups, extra=()):
        g = g0
        for sal, dm in groups:
            for x in sal: sch.pin(g, x)
            g += 1
            for x in dm:
                sch.pin(g, x); g += stride
        for x in extra:
            sch.pin(g, x); g += stride
        return g
    def pin_frags(self, sch, NQ, uses, frags, nxt):
        D, G = self.c["D"], self.c["G"]
        n = len(frags)
        allf = [(k, s, i, p, p) for p, (k, s, i) in enumerate(frags)] + \
               [(k, s, i, p, p + 64) for p, (k, s, i) in enumerate(nxt[:D])]
        for f in range(n):
            lastgap = uses[f] + NQ - 1
            haswait = ((f + 1) % G == 0) and (f + 1 < len(allf))
            if f + D < len(allf):
                k, s, i, p, tg = allf[f + D]
                rd = self.frag_reads(k, s, i, p, tg)
                if NQ == 3:
                    room = 2 - (1 if haswait else 0)
                    if len(rd) > room:
                        sch.pin(uses[f], rd[0]); sch.pin(lastgap, rd[1])
                    else:
                        for x in rd: sch.pin(lastgap, x)
                else:
                    for x in rd: sch.pin(uses[f], x)
            if haswait:
                tgt = min(f + G, len(allf) - 1)
                wg = (uses[f + 1] - 1) if f + 1 < n else sch.n - 1
                sch.pin(wg, WL(("F", allf[tgt][4], 64)), last=True)
    def first_reads(self, frags):
        out = []
        for p, (k, s, i) in enumerate(frags[:self.c["D"]]):
            out += self.frag_reads(k, s, i, p, p + 64)
        out.append(WL(("F", self.c["G"] - 1 + 64, 64)))
        return out
    def sm_place(self, sch, qts, kt, pbuf, lo, hi):
        items = [(qt, h) for qt in qts for h in range(2)]
        n = len(items)
        if n == 0: return
        span = (hi - lo) / n
        for k, (qt, h) in enumerate(items):
            s = Sr(qt, kt) + 2 * h
            w = lo + k * span
            g1 = sch.place(I(f"v_exp_f32 v{s}, v{s}"), w, lo, hi - 1)
            g2 = sch.place(I(f"v_exp_f32 v{s+1}, v{s+1}"), w + span / 2, lo, hi - 1)
            gm = max(g1, g2) + 1
            sch.place(I(f"v_cvt_pk_bf16_f32 v{Pr(pbuf, qt) + 2*kt + h}, v{s}, v{s+1}"), gm, gm, hi)
    def kfrags(self, slot): return [("K", slot, i) for i in range(16)]
    def vfrags(self, slot): return [("V", slot, i) for i in range(16)]
    def wfrags(self, slot): return [("W", slot, i) for i in range(16)]
    def qk_bb(self, NQ, czero):
        bb = []; uses = []
        for kt in range(2):
            for ks in range(8):
                uses.append(len(bb))
                for qt in range(NQ):
                    d = r4("v", Sr(qt, kt))
                    c = d if ks else ("0" if czero else r4("v", NMr(qt)))
                    bb.append(I(f"{MFMA} {d}, {self.fbuf(kt*8+ks)}, {Qr(qt, ks)}, {c}"))
        return bb, uses
    def step(self, wt, tm, first=False, qk=True, has_late=True, split=True, nxt="K", dmaK=True, dmaV=True,
             rel=0, static_t=None, loopend=None):
        c = self.c
        NQ = 3 if wt == "A" else 2
        bb = []; uses = []; frags = []
        if qk:
            bb, uses = self.qk_bb(NQ, False)
            frags = self.kfrags((tm + 1) & 3)
        nA = len(bb)
        pb = tm & 1
        for qt in range(NQ):
            d = r4("v", Lr(qt))
            bb.append(I(f"{MFMA} {d}, {r4('v', ONES)}, {r4('v', Pr(pb, qt))}, {'0' if first else d}"))
        base = len(frags)
        frags = frags + self.vfrags(tm & 3)
        for T in range(16):
            uses.append(len(bb))
            for qt in range(NQ):
                d = r4("a", Or(qt, T))
                bb.append(I(f"{MFMA} {d}, {self.fbuf(base+T)}, {r4('v', Pr(pb, qt))}, {'0' if first else d}"))
        sch = Sched(bb, cap=2 if wt == "A" else c["capB"])
        if qk:
            sch.pin(nA - 1, WV(("K", 2, 1), ("V", 1, 1)), last=True)
            sch.pin(nA - 1, I("s_barrier"), last=True)
            groups = []
            st = static_t is not None
            if dmaV: groups += self.tile_dma(wt, "V", (tm + 3) & 3, (static_t if st else rel) + 3, ("V", 3, 1), st)
            if dmaK: groups += self.tile_dma(wt, "K", (tm + 1) & 3, (static_t if st else rel) + 5, ("K", 5, 1), st, clamp=not st)
            self.pin_seq(sch, nA + c["dma_off"] - 1, c["dma_strideA" if wt == "A" else "dma_strideB"], groups)
        nf = {"K": self.kfrags((tm + 2) & 3), "V": self.vfrags((tm + 1) & 3), None: []}[nxt]
        self.pin_frags(sch, NQ, uses, frags, nf)
        if loopend:
            sch.pin(sch.n - 2, I(f"s_add_u32 s{sT}, s{sT}, 65536"))
            sch.pin(sch.n - 1, I(f"s_cmp_lt_u32 s{sT}, {61*16384}"), last=True)
            sch.pin(sch.n - 1, I(f"s_cbranch_scc1 {loopend}"), last=True)
        late = list(range(1, NQ))
        if qk:
            h = nA // 2
            if has_late:
                self.sm_place(sch, late, 1, pb, 0, h - 2)
            lo0 = h + 7
            lo1 = nA + 7
            n = sch.n
            if split:
                mid = lo0 + (n - 1 - lo0) * NQ // (NQ + 1)
                self.sm_place(sch, range(NQ), 0, pb ^ 1, lo0, mid)
                self.sm_place(sch, [0], 1, pb ^ 1, max(mid, lo1), n - 1)
            else:
                mid = lo0 + (n - 3 - lo0) // 2
                self.sm_place(sch, range(NQ), 0, pb ^ 1, lo0, mid)
                self.sm_place(sch, range(NQ), 1, pb ^ 1, max(mid, lo1), n - 3)
        self.last_loads = sch.loads()
        return sch.emit()
    def qchunk(self, wt, s):
        c = self.c
        NQ = 3 if wt == "A" else 2
        bb = []; uses = []
        for T in range(16):
            uses.append(len(bb))
            for qt in range(NQ):
                d = r4("v", ACCr(qt, T))
                bb.append(I(f"{MFMA} {d}, {self.fbuf(T)}, {r4('a', Xr(s, qt))}, {'0' if s == 0 else d}"))
        sch = Sched(bb, cap=2 if wt == "A" else c["capB"])
        tg = [("X", s, 0)]
        if s + 1 < 14: tg.append(("W", s + 1, 0))
        if s == 0: tg.append(("W", 0, 0))
        if s == 13: tg += [("K", 0, 0), ("K", 1, 0)]
        pre = [WV(*tg), I("s_barrier")]
        groups = []
        if s + 3 < 14: groups.append(self.w_dma(s + 3))
        kv = [("K", 0), ("K", 1), ("V", 0), ("K", 2), ("V", 1), ("K", 3)]
        extra = self.x_loads(s + 4, NQ) if s + 4 < 14 else []
        g = self.pin_seq(sch, 0, 1, groups, extra)
        k0 = c.get("kv0", 0)
        if k0 <= s < k0 + len(kv):
            k, t = kv[s - k0]
            g = self.pin_seq(sch, g, 1, self.tile_dma(wt, k, t, t, (k, t, 0), static=True))
        elif c["touch"]:
            idx = s - len(kv)
            for tt in range(c["touch"]):
                n = idx * c["touch"] + tt
                k, t = ("V", 2 + n // 2) if n % 2 == 0 else ("K", 4 + n // 2)
                srd = SK if k == "K" else SV
                sch.pin(g, I(f"s_mov_b32 s{sTmp}, {t*16384}"))
                x = I(f"buffer_load_dword v{vTouchD}, v{vTouch}, s[{srd}:{srd+3}], s{sTmp} offen", ("T", 0, 0)); x.cost = 2
                x.dst = []
                sch.pin(g + 1, x); g += 2
        nf = self.wfrags((s + 1) & 3) if s < 13 else self.kfrags(0)
        self.pin_frags(sch, NQ, uses, self.wfrags(s & 3), nf)
        return pre, sch.emit()
    def xlane_max(self, regs_list, tmp):
        o = []
        for sw in ("v_permlane32_swap_b32", "v_permlane16_swap_b32"):
            for i, r in enumerate(regs_list): o.append(I(f"v_mov_b32 v{tmp+i}, v{r}"))
            o.append(I("s_nop 1"))
            for i, r in enumerate(regs_list): o.append(I(f"{sw} v{r}, v{tmp+i}"))
            o.append(I("s_nop 1"))
            for i, r in enumerate(regs_list): o.append(I(f"v_max_f32 v{r}, v{r}, v{tmp+i}"))
        return o
    def set_negm(self, NQ, mregs):
        o = []
        for qt in range(NQ):
            for r in range(4):
                o.append(I(f"v_sub_f32 v{NMr(qt)+r}, 0, v{mregs[qt]}"))
        return o
    def wave_path(self, wt):
        c = self.c
        NQ = 3 if wt == "A" else 2
        L = lambda s: I(f"{s}_{wt}:")
        blocks = []
        b = [L("START")]
        for s in range(3):
            sal, dm = self.w_dma(s)
            b += sal + dm + self.x_loads(s, NQ)
        b += self.x_loads(3, NQ)
        b += self.stamp(1)
        blocks.append((b, -40))
        for s in range(14):
            pre, body = self.qchunk(wt, s)
            if s == 0:
                blocks.append((pre + self.first_reads(self.wfrags(0)) + self.stamp(2), -30 + s - 1))
                blocks.append((body, -30 + s))
            else:
                st = self.stamp(2 + s // 2, True) if s % 2 == 0 else []
                blocks.append((st + pre + body, -30 + s))
        b = self.stamp(3) + self.stamp(9, True) + [I("s_nop 7")]
        b.append(I(f"s_mov_b32 s{sTmp}, 0x{f2u(LOG2E_16):08x}"))
        for qt in range(NQ):
            for ks in range(8):
                a = ACCr(qt, 2 * ks); q = Q0 + qt * 32 + ks * 4
                for i in range(8): b.append(I(f"v_mul_f32 v{a+i}, s{sTmp}, v{a+i}"))
                for i in range(4): b.append(I(f"v_cvt_pk_bf16_f32 v{q+i}, v{a+2*i}, v{a+2*i+1}"))
        for r in range(4): b.append(I(f"v_mov_b32 v{ONES+r}, 0x3f803f80"))
        b.append(I("s_nop 1"))
        b += self.stamp(4)
        blocks.append((b, -16))
        bb, uses = self.qk_bb(NQ, True)
        sch = Sched(bb, cap=2 if wt == "A" else c["capB"])
        self.pin_frags(sch, NQ, uses, self.kfrags(0), self.kfrags(1))
        b = [L("PRE")] + sch.emit()
        b += [WV(("V", 0, 0), ("K", 1, 0)), I("s_barrier")]
        for sal, dm in self.tile_dma(wt, "V", 2, 2, ("V", 2, 0), True) + self.tile_dma(wt, "K", 0, 4, ("K", 4, 0), True):
            b += sal + dm
        b += [I("s_nop 7"), I(f"s_cmp_lg_u32 s{sRetry}, 0"), I(f"s_cbranch_scc1 HAVEM_{wt}")]
        m = [TMP + qt for qt in range(NQ)]
        for qt in range(NQ):
            s = Sr(qt, 0)
            b.append(I(f"v_max3_f32 v{m[qt]}, v{s}, v{s+1}, v{s+2}"))
            b.append(I(f"v_max3_f32 v{m[qt]}, v{m[qt]}, v{s+3}, v{s+4}"))
            b.append(I(f"v_max3_f32 v{m[qt]}, v{m[qt]}, v{s+5}, v{s+6}"))
            b.append(I(f"v_max_f32 v{m[qt]}, v{m[qt]}, v{s+7}"))
        b += self.xlane_max(m, TMP + 4)
        b += self.set_negm(NQ, m)
        b.append(L("HAVEM"))
        for qt in range(NQ):
            for i in range(8):
                s = Sr(qt, 0) + i
                b.append(I(f"v_add_f32 v{s}, v{s}, v{NMr(qt)}"))
        for qt in range(NQ):
            for i in range(8):
                s = Sr(qt, 0) + i
                b.append(I(f"v_exp_f32 v{s}, v{s}"))
        b.append(I("s_nop 0"))
        for qt in range(NQ):
            for i in range(4):
                s = Sr(qt, 0) + 2 * i
                b.append(I(f"v_cvt_pk_bf16_f32 v{Pr(0, qt)+i}, v{s}, v{s+1}"))
        if wt == "A": b.append(I(f"s_add_u32 s{sT}, s{sU}, 16384"))
        else: b.append(I(f"s_mov_b32 s{sT}, 16384"))
        b += self.stamp(5)
        pre_blk = b
        s0 = self.step(wt, 0, first=True, has_late=False, static_t=0)
        loop = [[L("LOOP")] + self.step(wt, 1, rel=0)]
        self.loads_dbg = self.last_loads
        loop += [self.step(wt, 2, rel=1), self.step(wt, 3, rel=2), self.step(wt, 0, rel=3, loopend=f"LOOP_{wt}")]
        t61 = self.stamp(6) + self.step(wt, 1, dmaK=False, dmaV=False, static_t=61)
        t62 = self.step(wt, 2, dmaK=False, dmaV=False, static_t=62, split=False, nxt="V")
        t63 = self.step(wt, 3, qk=False, nxt=None)
        e = self.stamp(7) + [I("s_nop 7")]
        e.append(I(f"s_mov_b32 s{sTmp}, 0x4e800000"))
        e.append(I(f"s_mov_b32 s{sFlag}, 0"))
        for qt in range(NQ):
            e.append(I(f"v_cmp_nlt_f32 vcc, v{Lr(qt)}, v{Lr(qt)}" if False else f"v_cmp_ngt_f32 vcc, s{sTmp}, v{Lr(qt)}"))
            e.append(I("s_cmp_lg_u64 vcc, 0"))
            e.append(I(f"s_cselect_b32 s{sFlag}, 1, s{sFlag}"))
        e.append(I(f"s_lshl_b32 s{sTmp}, s{sWave}, 2"))
        e.append(I(f"s_add_u32 s{sTmp}, s{sTmp}, {FLAGS}"))
        e.append(I(f"v_mov_b32 v{TMP}, s{sTmp}"))
        e.append(I(f"v_mov_b32 v{TMP+1}, s{sFlag}"))
        e.append(I(f"v_mov_b32 v{TMP+2}, {FLAGS}"))
        e.append(I(f"ds_write_b32 v{TMP}, v{TMP+1}"))
        e.append(I("s_waitcnt lgkmcnt(0)"))
        e.append(I("s_barrier"))
        e.append(I(f"ds_read_b128 v[{TMP+4}:{TMP+7}], v{TMP+2}"))
        for qt in range(NQ):
            e.append(I(f"v_rcp_f32 v{Lr(qt)}, v{Lr(qt)}"))
            e.append(I(f"v_rcp_f32 v{Lr(qt)+1}, v{Lr(qt)+1}"))
        e.append(I(f"v_mbcnt_lo_u32_b32 v{TMP+8}, -1, 0"))
        e.append(I(f"v_mbcnt_hi_u32_b32 v{TMP+8}, -1, v{TMP+8}"))
        e.append(I(f"v_lshlrev_b32 v{TMP+8}, 4, v{TMP+8}"))
        e.append(I(f"v_add_u32 v{TMP+9}, 4096, v{TMP+8}"))
        e.append(I("s_waitcnt lgkmcnt(0)"))
        e.append(I(f"v_or3_b32 v{TMP+4}, v{TMP+4}, v{TMP+5}, v{TMP+6}"))
        e.append(I(f"v_or_b32 v{TMP+4}, v{TMP+4}, v{TMP+7}"))
        e.append(I("s_nop 0"))
        e.append(I(f"v_readfirstlane_b32 s{sFlag}, v{TMP+4}"))
        e.append(I(f"s_andn2_b32 s{sFlag}, s{sFlag}, s{sRetry}"))
        e.append(I(f"s_cbranch_scc1 FALLBACK_{wt}"))
        k = 0
        for qt in range(NQ):
            for j in range(8):
                t = TMP + 12 + (k % 4) * 12; k += 1
                a = Or(qt, 2 * j)
                for i in range(8): e.append(I(f"v_accvgpr_read_b32 v{t+i}, a{a+i}"))
                for i in range(4): e.append(I(f"v_pk_mul_f32 v[{t+2*i}:{t+2*i+1}], v[{t+2*i}:{t+2*i+1}], v[{Lr(qt)}:{Lr(qt)+1}]"))
                for i in range(4): e.append(I(f"v_cvt_pk_bf16_f32 v{t+8+i}, v{t+2*i}, v{t+2*i+1}"))
                e.append(I(f"buffer_store_dwordx4 v[{t+8}:{t+11}], v{TMP+8+(j>>2)}, s[{SO}:{SO+3}], s{sO0+qt} offen offset:{(j&3)*1024}"))
        e += self.stamp(8)
        if c["stamps"]:
            e.append(I("s_waitcnt vmcnt(0)"))
            e += self.stamp(9)
            e.append(I(f"s_memrealtime s[{STAMP0+22}:{STAMP0+23}]"))
            e.append(I("s_waitcnt lgkmcnt(0)"))
            n = 12
            e.append(I(f"s_lshl_b32 s{sTmp}, s2, 2"))
            e.append(I(f"s_add_u32 s{sTmp}, s{sTmp}, s{sWave}"))
            e.append(I(f"s_mul_i32 s{sTmp}, s{sTmp}, {n*4}"))
            e.append(I(f"s_add_u32 s{SO}, s52, 0x10000000"))
            e.append(I(f"s_addc_u32 s{SO+1}, s53, 0"))
            e.append(I(f"s_mov_b32 s{SO+2}, 0x100000"))
            e.append(I(f"v_mov_b32 v{TMP}, 0"))
            for i in range(n):
                e.append(I(f"v_mov_b32 v{TMP+1+i}, s{STAMP0+2*i}"))
                e.append(I(f"buffer_store_dword v{TMP+1+i}, v{TMP}, s[{SO}:{SO+3}], s{sTmp} offen offset:{4*i}"))
        e.append(I("s_endpgm"))
        f = [L("FALLBACK"), I(f"s_mov_b32 s{sRetry}, 1"), I(f"s_mov_b32 s{sCnt}, 0")]
        m = [TMP + qt for qt in range(NQ)]
        for qt in range(NQ): f.append(I(f"v_mov_b32 v{m[qt]}, 0xff800000"))
        f.append(I(f"s_lshl_b32 s{sFlag}, s{sWave}, 12"))
        f.append(L("FBLOOP"))
        f.append(I("s_barrier"))
        f.append(I(f"s_mov_b32 m0, s{sFlag}"))
        f.append(I(f"s_add_u32 s{sTmp}, s{sFlag}, s{sCnt}"))
        for j in range(4):
            o = f" offset:{1024*j}" if j else ""
            f.append(I(f"buffer_load_dwordx4 v{vD[j]}, s[{SK}:{SK+3}], s{sTmp} offen{o} lds"))
        f.append(I("s_waitcnt vmcnt(0)"))
        f.append(I("s_barrier"))
        bb, uses = self.qk_bb(NQ, True)
        for h in range(2):
            for i in range(8): f += self.frag_reads("K", 0, h * 8 + i, h * 8 + i, 0)
            f.append(I("s_waitcnt lgkmcnt(0)"))
            f += bb[h * 8 * NQ:(h + 1) * 8 * NQ]
        f.append(I("s_nop 7"))
        for qt in range(NQ):
            s = Sr(qt, 0)
            for i in range(0, 8, 2):
                f.append(I(f"v_max3_f32 v{m[qt]}, v{m[qt]}, v{s+i}, v{s+i+1}"))
        f.append(I(f"s_add_u32 s{sCnt}, s{sCnt}, 16384"))
        f.append(I(f"s_cmp_lt_u32 s{sCnt}, {64*16384}"))
        f.append(I(f"s_cbranch_scc1 FBLOOP_{wt}"))
        f += self.xlane_max(m, TMP + 4)
        f += self.set_negm(NQ, m)
        f.append(I("s_barrier"))
        for k_, t_ in [("K", 0), ("K", 1), ("V", 0), ("K", 2), ("V", 1), ("K", 3)]:
            for sal, dm in self.tile_dma(wt, k_, t_, t_, None, static=True):
                f += sal + dm
        f.append(I("s_waitcnt vmcnt(0)"))
        f.append(I("s_barrier"))
        f += self.first_reads(self.kfrags(0))
        f.append(I(f"s_branch PRE_{wt}"))
        head = blocks[:-1]; conv = blocks[-1][0]
        head = [(blk, base + 15) for blk, base in head]
        main = [(pre_blk, -1), (s0, 0)]
        t = 1
        for it in range(15):
            for blk in loop:
                main.append((blk, t)); t += 1
        main += [(t61, 61), (t62, 62), (t63, 63), (e, 64)]
        trace = head + [(conv, -2)] + main
        trace2 = trace + [(f, -2)] + main
        resolve_waits(trace2)
        errs = check_trace(trace2, wt)
        order = [blk for blk, _ in head] + [conv, pre_blk, s0] + loop + [t61, t62, t63, e, f]
        return order, errs
    def k1(self):
        c = self.c
        h = [I(f"{K1}:")]
        A = h.append
        A(I("s_cmp_ge_u32 s2, 256")); A(I("s_cbranch_scc1 K1_END"))
        h += self.stamp(0)
        if c["stamps"]: h.append(I(f"s_memrealtime s[{STAMP0+20}:{STAMP0+21}]"))
        A(I("s_load_dwordx16 s[32:47], s[0:1], 0"))
        A(I("s_load_dwordx4 s[48:51], s[0:1], 64"))
        A(I("s_load_dwordx2 s[52:53], s[0:1], 96"))
        A(I("s_and_b32 s54, s2, 7")); A(I("s_lshr_b32 s55, s2, 3"))
        if c["map"] == 3:
            A(I("s_and_b32 s56, s54, 1")); A(I("s_lshl_b32 s56, s56, 3")); A(I("s_and_b32 s57, s55, 7")); A(I("s_add_u32 s56, s56, s57"))
            A(I("s_and_b32 s57, s54, 6")); A(I("s_bfe_u32 s58, s55, 0x10003")); A(I("s_add_u32 s57, s57, s58"))
        elif c["map"] == 2:
            A(I("s_lshl_b32 s56, s54, 1")); A(I("s_and_b32 s57, s55, 1")); A(I("s_add_u32 s56, s56, s57"))
            A(I("s_lshr_b32 s57, s55, 1")); A(I("s_and_b32 s57, s57, 7"))
        else:
            A(I("s_and_b32 s56, s55, 15")); A(I("s_mov_b32 s57, s54"))
        A(I("s_lshr_b32 s58, s55, 4"))
        A(I("v_lshrrev_b32 v30, 6, v0")); A(I("v_and_b32 v31, 63, v0"))
        A(I(f"v_readfirstlane_b32 s{sWave}, v30"))
        A(I("v_lshrrev_b32 v32, 4, v31")); A(I("v_and_b32 v33, 15, v31"))
        A(I("v_lshrrev_b32 v34, 5, v31")); A(I("v_and_b32 v35, 31, v31"))
        for j in range(4):
            A(I(f"v_add_u32 v36, {2*j}, v34"))
            A(I("v_lshlrev_b32 v37, 1, v36"))
            A(I("v_xor_b32 v37, v37, v35"))
            A(I("v_lshlrev_b32 v37, 4, v37"))
            A(I(f"v_lshl_add_u32 v{vD[j]}, v34, 9, v37"))
            A(I(f"v_lshl_add_u32 v{vWD[j]}, v34, 13, v37"))
            cst = (8 * (j >> 1) + 2 * (j & 1)) * 8192 - 1024 * j
            if cst: A(I(f"v_add_u32 v{vWD[j]}, {cst}, v{vWD[j]}"))
        A(I("v_and_b32 v36, 7, v33")); A(I("v_lshlrev_b32 v36, 1, v36"))
        for m in range(4):
            A(I(f"v_add_u32 v37, {4*m}, v32")); A(I("v_xor_b32 v37, v37, v36")); A(I("v_lshlrev_b32 v37, 4, v37"))
            A(I(f"v_lshl_add_u32 v{40+m}, v33, 9, v37"))
        A(I("v_lshrrev_b32 v36, 2, v33")); A(I("v_lshl_add_u32 v36, v32, 2, v36"))
        A(I("v_and_b32 v38, 3, v33")); A(I("v_and_b32 v39, 7, v36"))
        A(I("v_lshlrev_b32 v36, 9, v36"))
        for m in range(8):
            A(I(f"v_xor_b32 v37, {m}, v39")); A(I("v_lshlrev_b32 v37, 5, v37"))
            A(I("v_lshl_add_u32 v37, v38, 3, v37")); A(I("v_add_u32 v37, v37, v36"))
            A(I(f"v_add_u32 v{vVb[m]}, {VBASE}, v37"))
        A(I("v_lshlrev_b32 v39, 1, v39"))
        for m in range(4):
            A(I(f"v_add_u32 v37, {4*m}, v38")); A(I("v_xor_b32 v37, v37, v39")); A(I("v_lshlrev_b32 v37, 4, v37"))
            A(I("v_add_u32 v37, v37, v36")); A(I(f"v_add_u32 v{vWb[m]}, {WBASE}, v37"))
        A(I("v_mul_u32_u24 v36, 48, v30")); A(I("v_add_u32 v36, v36, v33"))
        A(I("v_mul_u32_u24 v36, 0x380, v36")); A(I(f"v_lshl_add_u32 v{vX}, v32, 4, v36"))
        A(I(f"v_lshlrev_b32 v{vTouch}, 6, v0"))
        for m in range(4): A(I(f"v_mov_b32 v{vKb[m]}, v{40+m}"))
        A(I(f"s_lshl_b32 s{sU}, s{sWave}, 12"))
        A(I(f"s_add_u32 s{sLim}, s{sU}, {63*16384}"))
        A(I(f"s_and_b32 s{sTmp}, s{sWave}, 1")); A(I(f"s_lshl_b32 s{sWoff}, s{sTmp}, 17"))
        A(I(f"s_lshr_b32 s{sTmp}, s{sWave}, 1")); A(I(f"s_lshl_b32 s{sTmp}, s{sTmp}, 15"))
        A(I(f"s_add_u32 s{sWoff}, s{sWoff}, s{sTmp}"))
        A(I(f"s_mov_b32 s{sRetry}, 0"))
        A(I(f"s_mov_b32 s{sX1}, 14336")); A(I(f"s_mov_b32 s{sX2}, 28672"))
        A(I(f"s_mul_i32 s{sO0}, s{sWave}, {3*131072}"))
        A(I(f"s_add_u32 s{sO0+1}, s{sO0}, 131072")); A(I(f"s_add_u32 s{sO0+2}, s{sO0}, 262144"))
        A(I("s_lshl_b32 s59, s57, 4")); A(I("s_add_u32 s59, s59, s56"))
        A(I("s_sub_u32 s54, 1, s58")); A(I("s_lshr_b32 s59, s59, s54")); A(I("s_lshl_b32 s59, s59, 20"))
        A(I("s_waitcnt lgkmcnt(0)"))
        A(I("s_cmp_eq_u32 s58, 0"))
        A(I(f"s_cselect_b64 s[{SK}:{SK+1}], s[34:35], s[44:45]"))
        A(I(f"s_cselect_b64 s[{SV}:{SV+1}], s[36:37], s[46:47]"))
        A(I(f"s_cselect_b64 s[{SW}:{SW+1}], s[38:39], s[48:49]"))
        A(I(f"s_cselect_b64 s[{SX}:{SX+1}], s[32:33], s[42:43]"))
        for S_ in (SK, SV):
            A(I(f"s_add_u32 s{S_}, s{S_}, s59")); A(I(f"s_addc_u32 s{S_+1}, s{S_+1}, 0"))
            A(I(f"s_mov_b32 s{S_+2}, 0x100000")); A(I(f"s_mov_b32 s{S_+3}, 0x20000"))
        A(I("s_lshl_b32 s54, s56, 9"))
        A(I(f"s_add_u32 s{SW}, s{SW}, s54")); A(I(f"s_addc_u32 s{SW+1}, s{SW+1}, 0"))
        A(I(f"s_sub_u32 s{SW+2}, {448*8192}, s54")); A(I(f"s_mov_b32 s{SW+3}, 0x20000"))
        A(I("s_mul_i32 s54, s57, 157696"))
        A(I(f"s_add_u32 s{SX}, s{SX}, s54")); A(I(f"s_addc_u32 s{SX+1}, s{SX+1}, 0"))
        A(I(f"s_mov_b32 s{SX+2}, 157696")); A(I(f"s_mov_b32 s{SX+3}, 0x20000"))
        A(I("s_lshl_b32 s54, s58, 3")); A(I("s_add_u32 s54, s54, s57")); A(I(f"s_mul_i32 s54, s54, {11*131072}"))
        A(I("s_lshl_b32 s55, s56, 13")); A(I("s_add_u32 s54, s54, s55"))
        A(I(f"s_add_u32 s{SO}, s52, s54")); A(I(f"s_addc_u32 s{SO+1}, s53, 0"))
        A(I(f"s_sub_u32 s{SO+2}, {11*131072}, s55")); A(I(f"s_mov_b32 s{SO+3}, 0x20000"))
        A(I(f"s_cmp_eq_u32 s{sWave}, 3")); A(I("s_cbranch_scc1 START_B"))
        errs = check_trace([(h, 0)], "head")
        oa, ea = self.wave_path("A"); la = self.loads_dbg
        ob, eb = self.wave_path("B"); lb = self.loads_dbg
        sys.stderr.write(f"loads A: {la}\nloads B: {lb}\n")
        end = [I("K1_END:"), I("s_endpgm")]
        return render([h] + oa + ob + [end]), errs + ea + eb

HEADER = open("cdna_kernels/" + NAME + ".s.ref").read().split("; @launch")[0]

def desc(name, vgpr, accum, sgpr=102):
    return f""".amdhsa_kernel {name}
  .amdhsa_next_free_vgpr {vgpr}
  .amdhsa_next_free_sgpr {sgpr}
  .amdhsa_accum_offset {accum}
  .amdhsa_group_segment_fixed_size 0
  .amdhsa_kernarg_size 104
  .amdhsa_user_sgpr_count 2
  .amdhsa_user_sgpr_kernarg_segment_ptr 1
  .amdhsa_system_sgpr_workgroup_id_x 1
.end_amdhsa_kernel
"""

def build(cfg):
    g = Gen(cfg)
    k1, errs = g.k1()
    import gen2
    k2, errs2, k2info = gen2.k2(cfg, K2)
    errs += errs2
    s = HEADER
    s += f"; @launch kernel={K1} grid=(256,1,1) block=(256,1,1) lds=163840\n"
    for _ in range(cfg.get("k2n", 1) if cfg["k2"] else 0):
        s += f"; @launch kernel={K2} grid=({k2info['grid']},1,1) block=(256,1,1) lds={k2info['lds']}\n"
    s += '.amdgcn_target "amdgcn-amd-amdhsa--gfx950"\n.text\n'
    s += f".globl {K1}\n.p2align 8\n.type {K1},@function\n" + k1
    if cfg["k2"]:
        s += f".globl {K2}\n.p2align 8\n.type {K2},@function\n" + k2
    s += '.section .rodata,"a"\n.p2align 6\n' + desc(K1, 512, 256)
    if cfg["k2"]:
        s += ".p2align 6\n" + desc(K2, k2info["vgpr"], k2info["accum"])
    return s, errs

if __name__ == "__main__":
    cfg = dict(DEF)
    out = sys.argv[1]
    for a in sys.argv[2:]:
        k, v = a.split("=", 1)
        cfg[k] = json.loads(v)
    s, errs = build(cfg)
    for e in errs[:40]: sys.stderr.write("HAZARD " + e + "\n")
    open(out, "w").write(s)
    sys.stderr.write(f"wrote {out} {len(s)} bytes, {len(errs)} hazards\n")
```

```python
from asmlib import *
def r4(p, b): return f"{p}[{b}:{b+3}]"
STAMP0 = 70
INVL_OFF = 48 << 20
def k2(cfg, name):
    stamps = cfg.get("stamps")
    ld = {0: "", 1: " nt", 2: " sc1"}[cfg.get("k2ld", 0)]
    def stamp(i): return [I(f"s_memtime s[{STAMP0+2*i}:{STAMP0+2*i+1}]")] if stamps else []
    SP, SL, SOut = 4, 8, 12
    h = [I(f"{name}:")]; A = h.append
    A(I("s_cmp_ge_u32 s2, 616")); A(I("s_cbranch_scc1 K2_END"))
    h += stamp(0)
    if stamps: A(I(f"s_memrealtime s[{STAMP0+20}:{STAMP0+21}]"))
    A(I("s_load_dwordx2 s[38:39], s[0:1], 80"))
    A(I("s_load_dwordx2 s[40:41], s[0:1], 96"))
    A(I("v_lshrrev_b32 v1, 6, v0")); A(I("v_and_b32 v0, 63, v0"))
    A(I("v_readfirstlane_b32 s24, v1"))
    A(I("v_lshlrev_b32 v2, 4, v0"))
    for i in range(1, 4): A(I(f"v_add_u32 v{2+i}, {4096*i}, v2"))
    A(I("v_and_b32 v6, 15, v0")); A(I("v_lshrrev_b32 v7, 4, v0"))
    A(I("v_lshlrev_b32 v8, 2, v6"))
    for i in range(1, 4): A(I(f"v_add_u32 v{8+i}, {4096*i}, v8"))
    A(I("v_mul_u32_u24 v12, 0x700, v6")); A(I("v_lshl_add_u32 v12, v7, 3, v12"))
    A(I("s_lshl_b32 s25, s2, 2")); A(I("s_add_u32 s25, s25, s24"))
    A(I("s_mul_i32 s26, s25, 6809")); A(I("s_lshr_b32 s26, s26, 20"))
    A(I("s_mul_i32 s27, s26, 154")); A(I("s_sub_u32 s27, s25, s27"))
    A(I("s_mul_i32 s28, s27, 147")); A(I("s_lshr_b32 s28, s28, 11"))
    A(I("s_mul_i32 s29, s28, 14")); A(I("s_sub_u32 s29, s27, s29"))
    A(I("s_lshl_b32 s30, s25, 14"))
    A(I("s_lshl_b32 s31, s26, 14")); A(I("s_lshl_b32 s32, s28, 6")); A(I("s_add_u32 s31, s31, s32"))
    A(I(f"s_add_u32 s31, s31, {INVL_OFF}"))
    A(I("s_and_b32 s33, s26, 7")); A(I("s_mul_i32 s33, s33, 11")); A(I("s_add_u32 s33, s33, s28"))
    A(I(f"s_mul_i32 s33, s33, {16*1792}")); A(I("s_lshr_b32 s34, s26, 3")); A(I("s_mul_i32 s34, s34, 896"))
    A(I("s_add_u32 s33, s33, s34")); A(I("s_lshl_b32 s34, s29, 6")); A(I("s_add_u32 s33, s33, s34"))
    A(I(f"s_mov_b32 s{SP+2}, 16384")); A(I(f"s_mov_b32 s{SP+3}, 0x20000"))
    A(I(f"s_mov_b32 s{SL+2}, 16384")); A(I(f"s_mov_b32 s{SL+3}, 0x20000"))
    A(I(f"s_sub_u32 s{SOut+2}, {1408*1792}, s33")); A(I(f"s_mov_b32 s{SOut+3}, 0x20000"))
    A(I("s_waitcnt lgkmcnt(0)"))
    A(I(f"s_add_u32 s{SP}, s40, s30")); A(I(f"s_addc_u32 s{SP+1}, s41, 0"))
    A(I(f"s_add_u32 s{SL}, s40, s31")); A(I(f"s_addc_u32 s{SL+1}, s41, 0"))
    A(I(f"s_add_u32 s{SOut}, s38, s33")); A(I(f"s_addc_u32 s{SOut+1}, s39, 0"))
    D0 = 48; L0 = 16; AC = 32; T0 = 40
    for hh in range(16):
        A(I(f"buffer_load_dwordx4 {r4('v', D0+4*hh)}, v{2+(hh>>2)}, s[{SP}:{SP+3}], 0 offen offset:{(hh&3)*1024}{ld}", ("P", hh, 0)))
        A(I(f"buffer_load_dword v{L0+hh}, v{8+(hh>>2)}, s[{SL}:{SL+3}], 0 offen offset:{(hh&3)*1024}", ("L", hh, 0)))
    h += stamp(1)
    A(I("s_mov_b32 s35, 0xffff0000"))
    for hh in range(16):
        A(WV(("L", hh, 0)))
        if hh == 0: h += stamp(2)
        for i in range(4):
            d = D0 + 4 * hh + i
            A(I(f"v_lshlrev_b32 v{T0+i}, 16, v{d}")); A(I(f"v_and_b32 v{d}, s35, v{d}"))
        for i in range(4):
            d = D0 + 4 * hh + i
            op = "v_mul_f32" if hh == 0 else "v_fmac_f32"
            A(I(f"{op} v{AC+2*i}, v{T0+i}, v{L0+hh}")); A(I(f"{op} v{AC+2*i+1}, v{d}, v{L0+hh}"))
    h += stamp(3)
    for i in range(4): A(I(f"v_cvt_pk_bf16_f32 v{T0+i}, v{AC+2*i}, v{AC+2*i+1}"))
    A(I(f"buffer_store_dwordx2 v[{T0}:{T0+1}], v12, s[{SOut}:{SOut+3}], 0 offen"))
    A(I(f"buffer_store_dwordx2 v[{T0+2}:{T0+3}], v12, s[{SOut}:{SOut+3}], 0 offen offset:32"))
    if stamps:
        h += stamp(4)
        A(I("s_waitcnt vmcnt(0)"))
        for i in range(5, 10): h += stamp(i)
        A(I(f"s_memrealtime s[{STAMP0+22}:{STAMP0+23}]"))
        A(I("s_waitcnt lgkmcnt(0)"))
        n = 12
        A(I(f"s_mul_i32 s25, s25, {n*4}"))
        A(I(f"s_add_u32 s{SP}, s40, 0x10100000")); A(I(f"s_addc_u32 s{SP+1}, s41, 0"))
        A(I(f"s_mov_b32 s{SP+2}, 0x100000"))
        A(I("v_mov_b32 v13, 0"))
        for i in range(n):
            A(I(f"v_mov_b32 v{D0+i}, s{STAMP0+2*i}"))
            A(I(f"buffer_store_dword v{D0+i}, v13, s[{SP}:{SP+3}], s25 offen offset:{4*i}"))
    h += [I("K2_END:"), I("s_endpgm")]
    trace = [(h, 0)]
    resolve_waits(trace)
    errs = check_trace(trace, "K2")
    return render([h]), errs, dict(grid=616, lds=0, vgpr=112, accum=112)
```

```python
import sys, math, json
from asmlib import *

NAME = "concat_heads__gqa_block_cached__mha_block_cached__near_ridge"
K1 = NAME + "_kernel"
K2 = "oproj_kernel"

DEF = dict(
    D=5, R=8, G=1,
    dmaA=["K"],
    dmaB=[("V", 0), ("V", 1), ("V", 2), ("V", 3), ("K", 3)],
    dma_off=1, dma_strideA=1, dma_strideB=1,
    nt=True, map=3, stamps=False, capB=4, cap63=4, capcv=3, pst=0,
    qsched=[["W0", "X0", "X1", "W1", "W2", "X2", "X3", "W3"],
            ["W4", "X4", "X5", "W5"], ["W6", "X6", "X7", "W7"], ["W8", "X8", "X9", "W9"], ["W10", "X10", "X11"],
            ["W11", "X12", "X13"], ["K0", "V0"], ["K1"], ["W12"], ["W13"], ["V1"], [], [], [], ["K2"]],
    k2=True,
)

vKb = [0, 1, 2, 3]; vVb = list(range(4, 12)); vD = [12, 13, 14, 15]
Q0 = 16; S0 = 112; P0 = 136; NM0 = 160; L0 = 172; ONES = 184; TMP = 188
vWb = [16, 17, 18, 19]; vWD = [20, 21, 22, 23]; vX = 24; vWa = [25, 26, 27, 28]
vOD = [248, 249, 250, 251]; vOb = [252, 253, 254, 255]; vOa = [0, 1, 2, 3]; vSt = [4, 5]
OFL = list(range(188, 248, 4)) + list(range(112, 148, 4))
def OF(qt, j): return OFL[qt * 8 + j]
def OACC(buf, T, qt): return 16 + ((buf * 4 + T) * 3 + qt) * 4
WSLOT = [8, 9, 6, 7, 0, 1, 2, 3, 8, 9, 6, 7, 2, 3]
OSLOT = [8, 9, 2, 0, 1, 3, 6, 7, 8, 9, 2, 0, 1, 3]
OORD = [(0, 0), (1, 0), (0, 1), (1, 1)] + [(cs, kh) for cs in range(2, 7) for kh in range(2)]
INVL_OFF = 48 << 20
ACC0 = 64
FR0 = 192
def Qr(qt, ks): b = Q0 + qt * 32 + ks * 4; return f"v[{b}:{b+3}]"
def Sr(qt, kt): return S0 + (qt * 2 + kt) * 4
def Pr(buf, qt): return P0 + (buf * 3 + qt) * 4
def NMr(qt): return NM0 + qt * 4
def Lr(qt): return L0 + qt * 4
def Or(qt, T): return (qt * 16 + T) * 4
def Xr(s, qt): return (s * 3 + qt) * 4
def ACCr(qt, T): return ACC0 + (qt * 16 + T) * 4
def r4(p, b): return f"{p}[{b}:{b+3}]"
SK, SV, SW, SX, SO = 4, 8, 12, 16, 20
sWave, sU, sT, sLim, sTmp, sWoff, sRetry, sQt = 24, 25, 26, 27, 28, 29, 30, 31
sX1, sX2 = 60, 61
sO0 = 62
sCnt = 65
sFlag = 66
STAMP0 = 70
VBASE = 65536; WBASE = 98304; FLAGS = 65536
SWO = 96
sOoff = 67; sLoff = 68
MFMA = "v_mfma_f32_16x16x32_bf16"
LOG2E_16 = 1.4426950408889634 / 16.0
import struct
def f2u(f): return struct.unpack("<I", struct.pack("<f", f))[0]

class Gen:
    def __init__(self, cfg):
        self.c = cfg
        self.nstamp = 0
    def stamp(self, i, q=False):
        if not self.c["stamps"]: return []
        if self.c.get("qst") and i >= 3 and not q: return []
        if q and not self.c.get("qst"): return []
        return [I(f"s_memtime s[{STAMP0+2*i}:{STAMP0+2*i+1}]")]
    def frag_reads(self, kind, slot, idx, pos, tagidx):
        b = FR0 + (pos % self.c["R"]) * 4
        tag = ("F", tagidx, 64)
        if kind == "K":
            kt, ks = idx >> 3, idx & 7
            off = slot * 16384 + kt * 8192 + (ks >> 2) * 256
            return [I(f"ds_read_b128 a[{b}:{b+3}], v{vKb[ks & 3]} offset:{off}", tag)]
        if kind == "V":
            off = slot * 16384 + (idx >> 3) * 256
            return [I(f"ds_read_b64_tr_b16 a[{b}:{b+1}], v{vVb[idx & 7]} offset:{off}", tag),
                    I(f"ds_read_b64_tr_b16 a[{b+2}:{b+3}], v{vVb[idx & 7]} offset:{off+8192}", tag)]
        if kind == "W":
            ks, par = idx >> 1, idx & 1
            br = vWb if slot >= 6 else vWa
            off = (slot - 6 if slot >= 6 else slot) * 16384 + (ks >> 2) * 256 + par * 8
            return [I(f"ds_read_b64_tr_b16 a[{b}:{b+1}], v{br[ks & 3]} offset:{off}", tag),
                    I(f"ds_read_b64_tr_b16 a[{b+2}:{b+3}], v{br[ks & 3]} offset:{off+8192}", tag)]
        if kind == "O":
            jj, T = idx >> 2, idx & 3
            br = vOb if slot >= 6 else vOa
            off = (slot - 6 if slot >= 6 else slot) * 16384 + jj * 4096
            return [I(f"ds_read_b64_tr_b16 a[{b}:{b+1}], v{br[T]} offset:{off}", tag),
                    I(f"ds_read_b64_tr_b16 a[{b+2}:{b+3}], v{br[T]} offset:{off+2048}", tag)]
    def fbuf(self, pos):
        b = FR0 + (pos % self.c["R"]) * 4
        return f"a[{b}:{b+3}]"
    def dma_group(self, wt, kind, u, slot, rel_tile, tag, static=False, clamp=False):
        nt = " nt" if self.c["nt"] else ""
        ldsb = (0 if kind == "K" else VBASE) + slot * 16384
        srd = SK if kind == "K" else SV
        sal = []
        if wt == "A":
            sal.append(I(f"s_add_u32 m0, s{sU}, {ldsb}"))
            if static: sal.append(I(f"s_add_u32 s{sTmp}, s{sU}, {rel_tile*16384}"))
            else: sal.append(I(f"s_add_u32 s{sTmp}, s{sT}, {rel_tile*16384}"))
            if clamp: sal.append(I(f"s_min_u32 s{sTmp}, s{sTmp}, s{sLim}"))
        else:
            sal.append(I(f"s_mov_b32 m0, {ldsb + 4096*u}"))
            if static: sal.append(I(f"s_mov_b32 s{sTmp}, {rel_tile*16384 + 4096*u}"))
            else: sal.append(I(f"s_add_u32 s{sTmp}, s{sT}, {rel_tile*16384 + 4096*u}"))
            if clamp: sal.append(I(f"s_min_u32 s{sTmp}, s{sTmp}, {63*16384 + 4096*u}"))
        dm = []
        for j in range(4):
            o = f" offset:{1024*j}" if j else ""
            x = I(f"buffer_load_dwordx4 v{vD[j]}, s[{srd}:{srd+3}], s{sTmp} offen{o}{nt} lds", tag)
            x.cost = 2
            dm.append(x)
        return sal, dm
    def groups_for(self, wt, kind):
        if wt == "A": return [None] * self.c["dmaA"].count(kind)
        return [u for k, u in self.c["dmaB"] if k == kind]
    def tile_dma(self, wt, kind, slot, rel_tile, tag, static=False, clamp=False):
        out = []
        for u in self.groups_for(wt, kind):
            out.append(self.dma_group(wt, kind, u, slot, rel_tile, tag, static, clamp))
        return out
    def w_dma(self, s):
        sal = [I(f"s_add_u32 m0, s{sU}, {WSLOT[s]*16384}"),
               I(f"s_add_u32 s{sTmp}, s{sWoff}, {s*262144}")]
        dm = []
        for j in range(4):
            o = f" offset:{1024*j}" if j else ""
            x = I(f"buffer_load_dwordx4 v{vWD[j]}, s[{SW}:{SW+3}], s{sTmp} offen{o} lds", ("W", s, 0))
            x.cost = 2
            dm.append(x)
        return sal, dm
    def o_dma(self, c_):
        cs, kh = OORD[c_]
        sal = [I(f"s_add_u32 m0, s{sU}, {OSLOT[c_]*16384}"),
               I(f"s_add_u32 s{sTmp}, s{sOoff}, {kh*128*896 + cs*128}")]
        dm = []
        for j in range(4):
            o = f" offset:{1024*j}" if j else ""
            x = I(f"buffer_load_dwordx4 v{vOD[j]}, s[{SWO}:{SWO+3}], s{sTmp} offen{o} lds", ("WO", c_, 0))
            x.cost = 2
            dm.append(x)
        return sal, dm
    def x_loads(self, s, NQ):
        out = []
        for qt in range(NQ):
            so = "0" if qt == 0 else f"s{sX1 + qt - 1}"
            x = I(f"buffer_load_dwordx4 {r4('a', Xr(s, qt))}, v{vX}, s[{SX}:{SX+3}], {so} offen offset:{s*64}", ("X", s, 0))
            x.cost = 2
            out.append(x)
        return out
    def pin_seq(self, sch, g0, stride, groups, extra=()):
        g = g0
        for sal, dm in groups:
            for x in sal: sch.pin(g, x)
            if sal: g += 1
            for x in dm:
                sch.pin(g, x); g += stride
        for x in extra:
            sch.pin(g, x); g += stride
        return g
    def pin_frags(self, sch, NQ, uses, frags, nxt):
        D, G = self.c["D"], self.c["G"]
        n = len(frags)
        allf = [(k, s, i, p, p) for p, (k, s, i) in enumerate(frags)] + \
               [(k, s, i, p, p + 64) for p, (k, s, i) in enumerate(nxt[:D])]
        for f in range(n):
            lastgap = uses[f] + NQ - 1
            haswait = ((f + 1) % G == 0) and (f + 1 < len(allf))
            if f + D < len(allf):
                k, s, i, p, tg = allf[f + D]
                rd = self.frag_reads(k, s, i, p, tg)
                if NQ == 3:
                    room = 2 - (1 if haswait else 0)
                    if len(rd) > room:
                        sch.pin(uses[f], rd[0]); sch.pin(lastgap, rd[1])
                    else:
                        for x in rd: sch.pin(lastgap, x)
                else:
                    for x in rd: sch.pin(uses[f], x)
            if haswait:
                tgt = min(f + G, len(allf) - 1)
                wg = (uses[f + 1] - 1) if f + 1 < n else sch.n - 1
                sch.pin(wg, WL(("F", allf[tgt][4], 64)), last=True)
    def first_reads(self, frags):
        out = []
        for p, (k, s, i) in enumerate(frags[:self.c["D"]]):
            out += self.frag_reads(k, s, i, p, p + 64)
        out.append(WL(("F", self.c["G"] - 1 + 64, 64)))
        return out
    def sm_place(self, sch, qts, kt, pbuf, lo, hi):
        items = [(qt, h) for qt in qts for h in range(2)]
        n = len(items)
        if n == 0: return
        span = (hi - lo) / n
        for k, (qt, h) in enumerate(items):
            s = Sr(qt, kt) + 2 * h
            w = lo + k * span
            g1 = sch.place(I(f"v_exp_f32 v{s}, v{s}"), w, lo, hi - 1)
            g2 = sch.place(I(f"v_exp_f32 v{s+1}, v{s+1}"), w + span / 2, lo, hi - 1)
            gm = max(g1, g2) + 1
            sch.place(I(f"v_cvt_pk_bf16_f32 v{Pr(pbuf, qt) + 2*kt + h}, v{s}, v{s+1}"), gm, gm, hi)
    def kfrags(self, slot): return [("K", slot, i) for i in range(16)]
    def vfrags(self, slot): return [("V", slot, i) for i in range(16)]
    def wfrags(self, s): return [("W", WSLOT[s], i) for i in range(16)]
    def ofrags(self, c_): return [("O", OSLOT[c_], i) for i in range(16)]
    def qk_bb(self, NQ, czero):
        bb = []; uses = []
        for kt in range(2):
            for ks in range(8):
                uses.append(len(bb))
                for qt in range(NQ):
                    d = r4("v", Sr(qt, kt))
                    c = d if ks else ("0" if czero else r4("v", NMr(qt)))
                    bb.append(I(f"{MFMA} {d}, {self.fbuf(kt*8+ks)}, {Qr(qt, ks)}, {c}"))
        return bb, uses
    def step(self, wt, tm, first=False, qk=True, has_late=True, split=True, nxt="K", dmaK=True, dmaV=True,
             rel=0, static_t=None, loopend=None, xgroups=(), xwait=(), pregroups=()):
        c = self.c
        NQ = 3 if wt == "A" else 2
        bb = []; uses = []; frags = []
        if qk:
            bb, uses = self.qk_bb(NQ, False)
            frags = self.kfrags((tm + 1) & 3)
        nA = len(bb)
        pb = tm & 1
        for qt in range(NQ):
            d = r4("v", Lr(qt))
            bb.append(I(f"{MFMA} {d}, {r4('v', ONES)}, {r4('v', Pr(pb, qt))}, {'0' if first else d}"))
        base = len(frags)
        frags = frags + self.vfrags(tm & 3)
        for T in range(16):
            uses.append(len(bb))
            for qt in range(NQ):
                d = r4("a", Or(qt, T))
                bb.append(I(f"{MFMA} {d}, {self.fbuf(base+T)}, {r4('v', Pr(pb, qt))}, {'0' if first else d}"))
        sch = Sched(bb, cap=2 if wt == "A" else c["capB"])
        if qk:
            sch.pin(nA - 1, WV(("K", 2, 1), ("V", 1, 1), *xwait), last=True)
            sch.pin(nA - 1, I("s_barrier"), last=True)
            groups = []
            st = static_t is not None
            if dmaV: groups += self.tile_dma(wt, "V", (tm + 3) & 3, (static_t if st else rel) + 3, ("V", 3, 1), st)
            if dmaK: groups += self.tile_dma(wt, "K", (tm + 1) & 3, (static_t if st else rel) + 5, ("K", 5, 1), st, clamp=not st)
            groups += list(xgroups)
            if pregroups: self.pin_seq(sch, 0, 1, pregroups)
            self.pin_seq(sch, nA + c["dma_off"] - 1, c["dma_strideA" if wt == "A" else "dma_strideB"], groups)
        nf = {"K": self.kfrags((tm + 2) & 3), "V": self.vfrags((tm + 1) & 3), None: []}[nxt]
        self.pin_frags(sch, NQ, uses, frags, nf)
        if loopend:
            sch.pin(sch.n - 2, I(f"s_add_u32 s{sT}, s{sT}, 65536"))
            sch.pin(sch.n - 1, I(f"s_cmp_lt_u32 s{sT}, {61*16384}"), last=True)
            sch.pin(sch.n - 1, I(f"s_cbranch_scc1 {loopend}"), last=True)
        late = list(range(1, NQ))
        if qk:
            h = nA // 2
            if has_late:
                self.sm_place(sch, late, 1, pb, 0, h - 2)
            lo0 = h + 7
            lo1 = nA + 7
            n = sch.n
            if split:
                mid = lo0 + (n - 1 - lo0) * NQ // (NQ + 1)
                self.sm_place(sch, range(NQ), 0, pb ^ 1, lo0, mid)
                self.sm_place(sch, [0], 1, pb ^ 1, max(mid, lo1), n - 1)
            else:
                mid = lo0 + (n - 3 - lo0) // 2
                self.sm_place(sch, range(NQ), 0, pb ^ 1, lo0, mid)
                self.sm_place(sch, range(NQ), 1, pb ^ 1, max(mid, lo1), n - 3)
        self.last_loads = sch.loads()
        return sch.emit()
    def items(self, wt, lst):
        NQ = 3 if wt == "A" else 2
        out = []
        for it in lst:
            k, t = it[0], int(it[1:])
            if k == "W": out.append(self.w_dma(t))
            elif k == "X": out.append(([], self.x_loads(t, NQ)))
            elif k == "O": out.append(self.o_dma(t))
            else: out += self.tile_dma(wt, k, t & 3, t, (k, t, 0), static=True)
        return out
    def qchunk(self, wt, s):
        c = self.c
        NQ = 3 if wt == "A" else 2
        bb = []; uses = []
        for T in range(16):
            uses.append(len(bb))
            for qt in range(NQ):
                d = r4("v", ACCr(qt, T))
                bb.append(I(f"{MFMA} {d}, {self.fbuf(T)}, {r4('a', Xr(s, qt))}, {'0' if s == 0 else d}"))
        sch = Sched(bb, cap=2 if wt == "A" else c["capB"])
        tg = [("X", s, 0)]
        if s + 1 < 14: tg.append(("W", s + 1, 0))
        if s == 0: tg.append(("W", 0, 0))
        if s == 13: tg += [("K", 0, 0), ("K", 1, 0)]
        pre = [WV(*tg), I("s_barrier")]
        self.pin_seq(sch, 0, 1, self.items(wt, c["qsched"][s + 1]))
        nf = self.wfrags(s + 1) if s < 13 else self.kfrags(0)
        self.pin_frags(sch, NQ, uses, self.wfrags(s), nf)
        return pre, sch.emit()
    def conv_units(self, NQ, Ts):
        u = []
        for T in Ts:
            for qt in range(NQ):
                t = NM0 + (self.cvk % 2) * 4; self.cvk += 1
                a = Or(qt, T); d = OF(qt, T >> 1) + 2 * (T & 1)
                u.append((T, qt, [I(f"v_accvgpr_read_b32 v{t+i}, a{a+i}") for i in range(4)] +
                          [I(f"v_cvt_pk_bf16_f32 v{d}, v{t}, v{t+1}"), I(f"v_cvt_pk_bf16_f32 v{d+1}, v{t+2}, v{t+3}")]))
        return u
    def seq_place(self, sch, ins, lo, hi, cap):
        g = lo
        for x in ins:
            while g < hi and sch.load(g) + x.cost > cap: g += 1
            sch.gaps[g].append(x)
        return g
    def step63(self, wt):
        c = self.c
        NQ = 3 if wt == "A" else 2
        bb = []; uses = []
        for qt in range(NQ):
            d = r4("v", Lr(qt))
            bb.append(I(f"{MFMA} {d}, {r4('v', ONES)}, {r4('v', Pr(1, qt))}, {d}"))
        for T in range(16):
            uses.append(len(bb))
            for qt in range(NQ):
                d = r4("a", Or(qt, T))
                bb.append(I(f"{MFMA} {d}, {self.fbuf(T)}, {r4('v', Pr(1, qt))}, {d}"))
        sch = Sched(bb, cap=2)
        bar = uses[16 - c["D"]] - 2
        sch.pin(bar, WV(("WO", 0, 0), ("WO", 1, 0)), last=True)
        sch.pin(bar, WL(("FL", 0, 0)), last=True)
        sch.pin(bar, I("s_barrier"), last=True)
        self.pin_frags(sch, NQ, uses, self.vfrags(3), self.ofrags(0))
        vt = NM0 + 8
        e = [I(f"s_mov_b32 s{sTmp}, 0x4e800000"), I(f"s_mov_b32 s{sFlag}, 0")]
        for qt in range(NQ):
            e.append(I(f"v_cmp_ngt_f32 vcc, s{sTmp}, v{Lr(qt)}"))
            e.append(I("s_cmp_lg_u64 vcc, 0"))
            e.append(I(f"s_cselect_b32 s{sFlag}, 1, s{sFlag}"))
        e.append(I(f"s_lshl_b32 s{sTmp}, s{sWave}, 2"))
        e.append(I(f"s_add_u32 s{sTmp}, s{sTmp}, {FLAGS}"))
        e.append(I(f"v_mov_b32 v{Lr(0)+1}, s{sTmp}"))
        e.append(I(f"v_mov_b32 v{Lr(0)+2}, s{sFlag}"))
        e.append(I(f"v_mov_b32 v{Lr(0)+3}, {FLAGS}"))
        e.append(I(f"ds_write_b32 v{Lr(0)+1}, v{Lr(0)+2}", ("FL", 0, 0)))
        for qt in range(NQ): e.append(I(f"v_rcp_f32 v{Lr(qt)}, v{Lr(qt)}"))
        e.append(I(f"v_mbcnt_lo_u32_b32 v{Lr(1)+1}, -1, 0"))
        e.append(I(f"v_mbcnt_hi_u32_b32 v{Lr(1)+1}, -1, v{Lr(1)+1}"))
        e.append(I(f"v_and_b32 v{Lr(1)+2}, 15, v{Lr(1)+1}"))
        e.append(I(f"v_lshlrev_b32 v{Lr(1)+2}, 2, v{Lr(1)+2}"))
        for qt in range(NQ):
            e.append(I(f"buffer_store_dword v{Lr(qt)}, v{Lr(1)+2}, s[{SO}:{SO+3}], s{sLoff} offen offset:{qt*64}"))
        cap = c["cap63"]
        g = self.seq_place(sch, e, NQ + 3, bar, cap)
        assert g < bar
        sch.pin(bar + 1, I(f"ds_read_b128 v[{vt}:{vt+3}], v{Lr(0)+3}", ("FL", 1, 0)))
        self.pin_seq(sch, bar + 1, 1, self.items(wt, ["O6"]))
        self.cvk = 0
        for T, qt, u in self.conv_units(NQ, range(8)):
            g = self.seq_place(sch, u, max(g, uses[T] + qt + 3), sch.n - 1, cap)
        e = [WL(("FL", 1, 0)), I(f"v_or3_b32 v{vt}, v{vt}, v{vt+1}, v{vt+2}"), I(f"v_or_b32 v{vt}, v{vt}, v{vt+3}"),
             I("s_nop 0"), I(f"v_readfirstlane_b32 s{sFlag}, v{vt}"), I(f"s_andn2_b32 s{sFlag}, s{sFlag}, s{sRetry}"),
             I(f"s_cbranch_scc1 FALLBACK_{wt}")]
        for x in e[:3]: sch.gaps[sch.n - 3].append(x)
        for x in e[4:]: sch.pin(sch.n - 1, x, last=True)
        self.l63 = sch.loads()
        return sch.emit()
    def ochunk(self, wt, c_):
        c = self.c
        NQ = 3 if wt == "A" else 2
        cs, kh = OORD[c_]
        bb = []; uses = []
        for f in range(16):
            jj, T = f >> 2, f & 3
            uses.append(len(bb))
            for qt in range(NQ):
                d = r4("v", OACC(cs & 1, T, qt))
                bb.append(I(f"{MFMA} {d}, {self.fbuf(f)}, {r4('v', OF(qt, 4*kh+jj))}, {'0' if kh == 0 and jj == 0 else d}"))
        cap = 2 if wt == "A" else c["capB"]
        sch = Sched(bb, cap=cap)
        pre = []
        if 1 <= c_ < 13: pre = [WV(("WO", c_ + 1, 0)), I("s_barrier")]
        if c_ == 0:
            for i in range(4): sch.pin(i // 2, I(f"v_subrev_u32 v{vOa[i]}, {WBASE}, v{vOb[i]}"))
            sch.pin(2, I(f"v_lshlrev_b32 v{vSt[0]}, 4, v{Lr(1)+1}"))
            sch.pin(3, I(f"v_add_u32 v{vSt[1]}, 16384, v{vSt[0]}"))
        iss = {1: ["O7", "O8"]}.get(c_, [f"O{c_+7}"] if 2 <= c_ <= 6 else [])
        self.pin_seq(sch, 0, 1, self.items(wt, iss))
        self.pin_frags(sch, NQ, uses, self.ofrags(c_), self.ofrags(c_ + 1) if c_ < 13 else [])
        if c_ < 2:
            g = 4 if c_ == 0 else 0
            for T, qt, u in self.conv_units(NQ, range(8 + 4 * c_, 12 + 4 * c_)):
                g = self.seq_place(sch, u, g, sch.n - 2, c["capcv"])
        done = {3: (0, (0, 1)), 4: (1, (0,)), 5: (1, (1,))}.get(c_)
        if c_ >= 6: done = (cs - 1, (kh,))
        if done:
            self.seq_place(sch, self.out_ins(NQ, *done), 4, sch.n - 1, cap)
        return pre + sch.emit()
    def out_ins(self, NQ, cs, tps):
        o = []
        st = {0: "", 1: " nt", 2: " sc1", 3: " sc0 sc1"}[self.c["pst"]]
        for tp in tps:
            for qt in range(NQ):
                a = OACC(cs & 1, 2 * tp, qt); b = OACC(cs & 1, 2 * tp + 1, qt)
                o.append(I(f"v_cvt_pk_bf16_f32 v{a}, v{a}, v{a+1}")); o.append(I(f"v_cvt_pk_bf16_f32 v{a+1}, v{a+2}, v{a+3}"))
                o.append(I(f"v_cvt_pk_bf16_f32 v{a+2}, v{b}, v{b+1}")); o.append(I(f"v_cvt_pk_bf16_f32 v{a+3}, v{b+2}, v{b+3}"))
                x = I(f"buffer_store_dwordx4 v[{a}:{a+3}], v{vSt[tp]}, s[{SO}:{SO+3}], s{sO0+qt} offen{st}"); x.cost = 2
                o.append(x)
                if tp == 1: o.append(I(f"s_add_u32 s{sO0+qt}, s{sO0+qt}, 32768"))
        return o
    def xlane_max(self, regs_list, tmp):
        o = []
        for sw in ("v_permlane32_swap_b32", "v_permlane16_swap_b32"):
            for i, r in enumerate(regs_list): o.append(I(f"v_mov_b32 v{tmp+i}, v{r}"))
            o.append(I("s_nop 1"))
            for i, r in enumerate(regs_list): o.append(I(f"{sw} v{r}, v{tmp+i}"))
            o.append(I("s_nop 1"))
            for i, r in enumerate(regs_list): o.append(I(f"v_max_f32 v{r}, v{r}, v{tmp+i}"))
        return o
    def set_negm(self, NQ, mregs):
        o = []
        for qt in range(NQ):
            for r in range(4):
                o.append(I(f"v_sub_f32 v{NMr(qt)+r}, 0, v{mregs[qt]}"))
        return o
    def wave_path(self, wt):
        c = self.c
        NQ = 3 if wt == "A" else 2
        L = lambda s: I(f"{s}_{wt}:")
        blocks = []
        b = [L("START")]
        for sal, dm in self.items(wt, c["qsched"][0]):
            b += sal + dm
        b += self.stamp(1)
        blocks.append((b, -40))
        for s in range(14):
            pre, body = self.qchunk(wt, s)
            if s == 0:
                blocks.append((pre + self.first_reads(self.wfrags(0)) + self.stamp(2), -30 + s - 1))
                blocks.append((body, -30 + s))
            else:
                st = self.stamp(2 + s // 2, True) if s % 2 == 0 else []
                blocks.append((st + pre + body, -30 + s))
        b = self.stamp(3) + self.stamp(9, True) + [I("s_nop 7")]
        b.append(I(f"s_mov_b32 s{sTmp}, 0x{f2u(LOG2E_16):08x}"))
        for qt in range(NQ):
            for ks in range(8):
                a = ACCr(qt, 2 * ks); q = Q0 + qt * 32 + ks * 4
                for i in range(8): b.append(I(f"v_mul_f32 v{a+i}, s{sTmp}, v{a+i}"))
                for i in range(4): b.append(I(f"v_cvt_pk_bf16_f32 v{q+i}, v{a+2*i}, v{a+2*i+1}"))
        for r in range(4): b.append(I(f"v_mov_b32 v{ONES+r}, 0x3f803f80"))
        t = TMP
        for x in [f"v_mbcnt_lo_u32_b32 v{t}, -1, 0", f"v_mbcnt_hi_u32_b32 v{t}, -1, v{t}",
                  f"v_lshrrev_b32 v{t+1}, 3, v{t}", f"v_and_b32 v{t+2}, 7, v{t}", f"v_and_b32 v{t+3}, 6, v{t+1}",
                  f"v_xor_b32 v{t+2}, v{t+2}, v{t+3}", f"v_lshlrev_b32 v{t+2}, 4, v{t+2}",
                  f"v_mul_u32_u24 v{t+1}, 0x380, v{t+1}", f"v_add_u32 v{vOD[0]}, v{t+1}, v{t+2}"] + \
                 [f"v_add_u32 v{vOD[j]}, {6144*j}, v{vOD[0]}" for j in range(1, 4)] + \
                 [f"v_lshrrev_b32 v{t+1}, 2, v{t}",
                  f"v_and_b32 v{t+2}, 3, v{t}", f"v_bfe_u32 v{t+3}, v{t}, 3, 2",
                  f"v_lshlrev_b32 v{t+1}, 7, v{t+1}", f"v_lshl_add_u32 v{t+1}, v{t+2}, 3, v{t+1}",
                  f"v_add_u32 v{t+1}, {WBASE}, v{t+1}"]:
            b.append(I(x))
        for T in range(4):
            b.append(I(f"v_xor_b32 v{t+2}, {T}, v{t+3}")); b.append(I(f"v_lshl_add_u32 v{vOb[T]}, v{t+2}, 5, v{t+1}"))
        b.append(I("s_nop 1"))
        b += self.stamp(4)
        blocks.append((b, -16))
        bb, uses = self.qk_bb(NQ, True)
        sch = Sched(bb, cap=2 if wt == "A" else c["capB"])
        self.pin_frags(sch, NQ, uses, self.kfrags(0), self.kfrags(1))
        b = [L("PRE")] + sch.emit()
        b += [WV(("V", 0, 0), ("K", 1, 0)), I("s_barrier")]
        b += [I("s_nop 7"), I(f"s_cmp_lg_u32 s{sRetry}, 0"), I(f"s_cbranch_scc1 HAVEM_{wt}")]
        m = [TMP + qt for qt in range(NQ)]
        for qt in range(NQ):
            s = Sr(qt, 0)
            b.append(I(f"v_max3_f32 v{m[qt]}, v{s}, v{s+1}, v{s+2}"))
            b.append(I(f"v_max3_f32 v{m[qt]}, v{m[qt]}, v{s+3}, v{s+4}"))
            b.append(I(f"v_max3_f32 v{m[qt]}, v{m[qt]}, v{s+5}, v{s+6}"))
            b.append(I(f"v_max_f32 v{m[qt]}, v{m[qt]}, v{s+7}"))
        b += self.xlane_max(m, TMP + 4)
        b += self.set_negm(NQ, m)
        b.append(L("HAVEM"))
        for qt in range(NQ):
            for i in range(8):
                s = Sr(qt, 0) + i
                b.append(I(f"v_add_f32 v{s}, v{s}, v{NMr(qt)}"))
        for qt in range(NQ):
            for i in range(8):
                s = Sr(qt, 0) + i
                b.append(I(f"v_exp_f32 v{s}, v{s}"))
        b.append(I("s_nop 0"))
        for qt in range(NQ):
            for i in range(4):
                s = Sr(qt, 0) + 2 * i
                b.append(I(f"v_cvt_pk_bf16_f32 v{Pr(0, qt)+i}, v{s}, v{s+1}"))
        if wt == "A": b.append(I(f"s_add_u32 s{sT}, s{sU}, 16384"))
        else: b.append(I(f"s_mov_b32 s{sT}, 16384"))
        b += self.stamp(5)
        pre_blk = b
        s0 = self.step(wt, 0, first=True, has_late=False, static_t=0, pregroups=self.items(wt, ["K3", "V2", "K4"]))
        loop = [[L("LOOP")] + self.step(wt, 1, rel=0)]
        self.loads_dbg = self.last_loads
        loop += [self.step(wt, 2, rel=1), self.step(wt, 3, rel=2), self.step(wt, 0, rel=3, loopend=f"LOOP_{wt}")]
        t61 = self.stamp(6) + self.step(wt, 1, dmaK=False, dmaV=False, static_t=61, xgroups=self.items(wt, ["O0", "O1", "O2"]))
        t62 = self.step(wt, 2, dmaK=False, dmaV=False, static_t=62, split=False, nxt="V", xwait=[("K", 65, 0)],
                        xgroups=self.items(wt, ["O3", "O4", "O5"]))
        t63 = self.step63(wt)
        sys.stderr.write(f"l63 {wt}: {self.l63}\n")
        och = [self.ochunk(wt, i) for i in range(14)]
        och[0] = self.stamp(7) + och[0]
        e = [I("s_nop 5")] + self.out_ins(NQ, 6, (0, 1))
        e += self.stamp(8)
        if c["stamps"]:
            e.append(I("s_waitcnt vmcnt(0)"))
            e += self.stamp(9)
            e.append(I(f"s_memrealtime s[{STAMP0+22}:{STAMP0+23}]"))
            e.append(I("s_waitcnt lgkmcnt(0)"))
            n = 12
            e.append(I(f"s_lshl_b32 s{sTmp}, s2, 2"))
            e.append(I(f"s_add_u32 s{sTmp}, s{sTmp}, s{sWave}"))
            e.append(I(f"s_mul_i32 s{sTmp}, s{sTmp}, {n*4}"))
            e.append(I(f"s_add_u32 s{SO}, s52, 0x10000000"))
            e.append(I(f"s_addc_u32 s{SO+1}, s53, 0"))
            e.append(I(f"s_mov_b32 s{SO+2}, 0x100000"))
            e.append(I(f"v_mov_b32 v{TMP}, 0"))
            for i in range(n):
                e.append(I(f"v_mov_b32 v{TMP+1+i}, s{STAMP0+2*i}"))
                e.append(I(f"buffer_store_dword v{TMP+1+i}, v{TMP}, s[{SO}:{SO+3}], s{sTmp} offen offset:{4*i}"))
        e.append(I("s_endpgm"))
        f = [L("FALLBACK"), I("s_waitcnt vmcnt(0) lgkmcnt(0)"), I(f"s_mov_b32 s{sRetry}, 1"), I(f"s_mov_b32 s{sCnt}, 0")]
        m = [TMP + qt for qt in range(NQ)]
        for qt in range(NQ): f.append(I(f"v_mov_b32 v{m[qt]}, 0xff800000"))
        f.append(I(f"s_lshl_b32 s{sFlag}, s{sWave}, 12"))
        f.append(L("FBLOOP"))
        f.append(I("s_barrier"))
        f.append(I(f"s_mov_b32 m0, s{sFlag}"))
        f.append(I(f"s_add_u32 s{sTmp}, s{sFlag}, s{sCnt}"))
        for j in range(4):
            o = f" offset:{1024*j}" if j else ""
            f.append(I(f"buffer_load_dwordx4 v{vD[j]}, s[{SK}:{SK+3}], s{sTmp} offen{o} lds"))
        f.append(I("s_waitcnt vmcnt(0)"))
        f.append(I("s_barrier"))
        bb, uses = self.qk_bb(NQ, True)
        for h in range(2):
            for i in range(8): f += self.frag_reads("K", 0, h * 8 + i, h * 8 + i, 0)
            f.append(I("s_waitcnt lgkmcnt(0)"))
            f += bb[h * 8 * NQ:(h + 1) * 8 * NQ]
        f.append(I("s_nop 7"))
        for qt in range(NQ):
            s = Sr(qt, 0)
            for i in range(0, 8, 2):
                f.append(I(f"v_max3_f32 v{m[qt]}, v{m[qt]}, v{s+i}, v{s+i+1}"))
        f.append(I(f"s_add_u32 s{sCnt}, s{sCnt}, 16384"))
        f.append(I(f"s_cmp_lt_u32 s{sCnt}, {64*16384}"))
        f.append(I(f"s_cbranch_scc1 FBLOOP_{wt}"))
        f += self.xlane_max(m, TMP + 4)
        f += self.set_negm(NQ, m)
        f.append(I("s_barrier"))
        for k_, t_ in [("K", 0), ("K", 1), ("V", 0), ("K", 2), ("V", 1)]:
            for sal, dm in self.tile_dma(wt, k_, t_, t_, None, static=True):
                f += sal + dm
        f.append(I("s_waitcnt vmcnt(0)"))
        f.append(I("s_barrier"))
        f += self.first_reads(self.kfrags(0))
        f.append(I(f"s_branch PRE_{wt}"))
        head = blocks[:-1]; conv = blocks[-1][0]
        head = [(blk, base + 15) for blk, base in head]
        main = [(pre_blk, -1), (s0, 0)]
        t = 1
        for it in range(15):
            for blk in loop:
                main.append((blk, t)); t += 1
        main += [(t61, 61), (t62, 62), (t63, 63)]
        fin = [(blk, 64 + i) for i, blk in enumerate(och)] + [(e, 80)]
        trace = head + [(conv, -2)] + main
        trace2 = trace + [(f, -2)] + main + fin
        resolve_waits(trace2)
        errs = check_trace(trace2, wt)
        order = [blk for blk, _ in head] + [conv, pre_blk, s0] + loop + [t61, t62, t63] + och + [e, f]
        return order, errs
    def k1(self):
        c = self.c
        h = [I(f"{K1}:")]
        A = h.append
        A(I("s_cmp_ge_u32 s2, 256")); A(I("s_cbranch_scc1 K1_END"))
        h += self.stamp(0)
        if c["stamps"]: h.append(I(f"s_memrealtime s[{STAMP0+20}:{STAMP0+21}]"))
        A(I("s_load_dwordx16 s[32:47], s[0:1], 0"))
        A(I("s_load_dwordx4 s[48:51], s[0:1], 64"))
        A(I("s_load_dwordx2 s[52:53], s[0:1], 96"))
        A(I("s_and_b32 s54, s2, 7")); A(I("s_lshr_b32 s55, s2, 3"))
        if c["map"] == 3:
            A(I("s_and_b32 s56, s54, 1")); A(I("s_lshl_b32 s56, s56, 3")); A(I("s_and_b32 s57, s55, 7")); A(I("s_add_u32 s56, s56, s57"))
            A(I("s_and_b32 s57, s54, 6")); A(I("s_bfe_u32 s58, s55, 0x10003")); A(I("s_add_u32 s57, s57, s58"))
        elif c["map"] == 2:
            A(I("s_lshl_b32 s56, s54, 1")); A(I("s_and_b32 s57, s55, 1")); A(I("s_add_u32 s56, s56, s57"))
            A(I("s_lshr_b32 s57, s55, 1")); A(I("s_and_b32 s57, s57, 7"))
        else:
            A(I("s_and_b32 s56, s55, 15")); A(I("s_mov_b32 s57, s54"))
        A(I("s_lshr_b32 s58, s55, 4"))
        A(I("v_lshrrev_b32 v30, 6, v0")); A(I("v_and_b32 v31, 63, v0"))
        A(I(f"v_readfirstlane_b32 s{sWave}, v30"))
        A(I("v_lshrrev_b32 v32, 4, v31")); A(I("v_and_b32 v33, 15, v31"))
        A(I("v_lshrrev_b32 v34, 5, v31")); A(I("v_and_b32 v35, 31, v31"))
        for j in range(4):
            A(I(f"v_add_u32 v36, {2*j}, v34"))
            A(I("v_lshlrev_b32 v37, 1, v36"))
            A(I("v_xor_b32 v37, v37, v35"))
            A(I("v_lshlrev_b32 v37, 4, v37"))
            A(I(f"v_lshl_add_u32 v{vD[j]}, v34, 9, v37"))
            A(I(f"v_lshl_add_u32 v{vWD[j]}, v34, 13, v37"))
            cst = (8 * (j >> 1) + 2 * (j & 1)) * 8192 - 1024 * j
            if cst: A(I(f"v_add_u32 v{vWD[j]}, {cst}, v{vWD[j]}"))
        A(I("v_and_b32 v36, 7, v33")); A(I("v_lshlrev_b32 v36, 1, v36"))
        for m in range(4):
            A(I(f"v_add_u32 v37, {4*m}, v32")); A(I("v_xor_b32 v37, v37, v36")); A(I("v_lshlrev_b32 v37, 4, v37"))
            A(I(f"v_lshl_add_u32 v{40+m}, v33, 9, v37"))
        A(I("v_lshrrev_b32 v36, 2, v33")); A(I("v_lshl_add_u32 v36, v32, 2, v36"))
        A(I("v_and_b32 v38, 3, v33")); A(I("v_and_b32 v39, 7, v36"))
        A(I("v_lshlrev_b32 v36, 9, v36"))
        for m in range(8):
            A(I(f"v_xor_b32 v37, {m}, v39")); A(I("v_lshlrev_b32 v37, 5, v37"))
            A(I("v_lshl_add_u32 v37, v38, 3, v37")); A(I("v_add_u32 v37, v37, v36"))
            A(I(f"v_add_u32 v{vVb[m]}, {VBASE}, v37"))
        A(I("v_lshlrev_b32 v39, 1, v39"))
        for m in range(4):
            A(I(f"v_add_u32 v37, {4*m}, v38")); A(I("v_xor_b32 v37, v37, v39")); A(I("v_lshlrev_b32 v37, 4, v37"))
            A(I(f"v_add_u32 v{vWa[m]}, v37, v36")); A(I(f"v_add_u32 v{vWb[m]}, {WBASE}, v{vWa[m]}"))
        A(I("v_mul_u32_u24 v36, 48, v30")); A(I("v_add_u32 v36, v36, v33"))
        A(I("v_mul_u32_u24 v36, 0x380, v36")); A(I(f"v_lshl_add_u32 v{vX}, v32, 4, v36"))
        for m in range(4): A(I(f"v_mov_b32 v{vKb[m]}, v{40+m}"))
        A(I(f"s_lshl_b32 s{sU}, s{sWave}, 12"))
        A(I(f"s_add_u32 s{sLim}, s{sU}, {63*16384}"))
        A(I(f"s_and_b32 s{sTmp}, s{sWave}, 1")); A(I(f"s_lshl_b32 s{sWoff}, s{sTmp}, 17"))
        A(I(f"s_lshr_b32 s{sTmp}, s{sWave}, 1")); A(I(f"s_lshl_b32 s{sTmp}, s{sTmp}, 15"))
        A(I(f"s_add_u32 s{sWoff}, s{sWoff}, s{sTmp}"))
        A(I(f"s_mov_b32 s{sRetry}, 0"))
        A(I(f"s_mov_b32 s{sX1}, 14336")); A(I(f"s_mov_b32 s{sX2}, 28672"))
        A(I(f"s_mul_i32 s{sO0}, s{sWave}, {3*14*16384}"))
        A(I(f"s_add_u32 s{sO0+1}, s{sO0}, {14*16384}")); A(I(f"s_add_u32 s{sO0+2}, s{sO0}, {28*16384}"))
        A(I(f"s_mul_i32 s{sOoff}, s{sWave}, {32*896}"))
        A(I("s_lshl_b32 s59, s57, 4")); A(I("s_add_u32 s59, s59, s56"))
        A(I("s_sub_u32 s54, 1, s58")); A(I("s_lshr_b32 s59, s59, s54")); A(I("s_lshl_b32 s59, s59, 20"))
        A(I("s_waitcnt lgkmcnt(0)"))
        A(I("s_cmp_eq_u32 s58, 0"))
        A(I(f"s_cselect_b64 s[{SK}:{SK+1}], s[34:35], s[44:45]"))
        A(I(f"s_cselect_b64 s[{SV}:{SV+1}], s[36:37], s[46:47]"))
        A(I(f"s_cselect_b64 s[{SW}:{SW+1}], s[38:39], s[48:49]"))
        A(I(f"s_cselect_b64 s[{SX}:{SX+1}], s[32:33], s[42:43]"))
        for S_ in (SK, SV):
            A(I(f"s_add_u32 s{S_}, s{S_}, s59")); A(I(f"s_addc_u32 s{S_+1}, s{S_+1}, 0"))
            A(I(f"s_mov_b32 s{S_+2}, 0x100000")); A(I(f"s_mov_b32 s{S_+3}, 0x20000"))
        A(I("s_lshl_b32 s54, s56, 9"))
        A(I(f"s_add_u32 s{SW}, s{SW}, s54")); A(I(f"s_addc_u32 s{SW+1}, s{SW+1}, 0"))
        A(I(f"s_sub_u32 s{SW+2}, {448*8192}, s54")); A(I(f"s_mov_b32 s{SW+3}, 0x20000"))
        A(I("s_mul_i32 s54, s57, 157696"))
        A(I(f"s_add_u32 s{SX}, s{SX}, s54")); A(I(f"s_addc_u32 s{SX+1}, s{SX+1}, 0"))
        A(I(f"s_mov_b32 s{SX+2}, 157696")); A(I(f"s_mov_b32 s{SX+3}, 0x20000"))
        A(I("s_lshl_b32 s54, s58, 3")); A(I("s_add_u32 s54, s54, s57"))
        A(I(f"s_mul_i32 s{sLoff}, s54, {153*16384}")); A(I(f"s_sub_u32 s{sLoff}, {INVL_OFF}, s{sLoff}"))
        A(I(f"s_mul_i32 s55, s{sWave}, 192")); A(I(f"s_add_u32 s{sLoff}, s{sLoff}, s55"))
        A(I(f"s_mul_i32 s54, s54, {154*16384}"))
        A(I("s_lshl_b32 s55, s56, 10")); A(I("s_add_u32 s54, s54, s55"))
        A(I(f"s_add_u32 s{SO}, s52, s54")); A(I(f"s_addc_u32 s{SO+1}, s53, 0"))
        A(I(f"s_mov_b32 s{SO+2}, {64 << 20}")); A(I(f"s_mov_b32 s{SO+3}, 0x20000"))
        A(I("s_cmp_eq_u32 s58, 0"))
        A(I(f"s_cselect_b64 s[{SWO}:{SWO+1}], s[40:41], s[50:51]"))
        A(I(f"s_mul_i32 s54, s56, {256*896}"))
        A(I(f"s_add_u32 s{SWO}, s{SWO}, s54")); A(I(f"s_addc_u32 s{SWO+1}, s{SWO+1}, 0"))
        A(I(f"s_mov_b32 s{SWO+2}, {256*896}")); A(I(f"s_mov_b32 s{SWO+3}, 0x20000"))
        A(I(f"s_cmp_eq_u32 s{sWave}, 3")); A(I("s_cbranch_scc1 START_B"))
        errs = check_trace([(h, 0)], "head")
        oa, ea = self.wave_path("A"); la = self.loads_dbg
        ob, eb = self.wave_path("B"); lb = self.loads_dbg
        sys.stderr.write(f"loads A: {la}\nloads B: {lb}\n")
        end = [I("K1_END:"), I("s_endpgm")]
        return render([h] + oa + ob + [end]), errs + ea + eb

HEADER = open("cdna_kernels/" + NAME + ".s.ref").read().split("; @launch")[0]

def desc(name, vgpr, accum, sgpr=102):
    return f""".amdhsa_kernel {name}
  .amdhsa_next_free_vgpr {vgpr}
  .amdhsa_next_free_sgpr {sgpr}
  .amdhsa_accum_offset {accum}
  .amdhsa_group_segment_fixed_size 0
  .amdhsa_kernarg_size 104
  .amdhsa_user_sgpr_count 2
  .amdhsa_user_sgpr_kernarg_segment_ptr 1
  .amdhsa_system_sgpr_workgroup_id_x 1
.end_amdhsa_kernel
"""

def build(cfg):
    g = Gen(cfg)
    k1, errs = g.k1()
    import gen2
    k2, errs2, k2info = gen2.k2(cfg, K2)
    errs += errs2
    s = HEADER
    s += f"; @launch kernel={K1} grid=(256,1,1) block=(256,1,1) lds=163840\n"
    for _ in range(cfg.get("k2n", 1) if cfg["k2"] else 0):
        s += f"; @launch kernel={K2} grid=({k2info['grid']},1,1) block=(256,1,1) lds={k2info['lds']}\n"
    s += '.amdgcn_target "amdgcn-amd-amdhsa--gfx950"\n.text\n'
    s += f".globl {K1}\n.p2align 8\n.type {K1},@function\n" + k1
    if cfg["k2"]:
        s += f".globl {K2}\n.p2align 8\n.type {K2},@function\n" + k2
    s += '.section .rodata,"a"\n.p2align 6\n' + desc(K1, 512, 256)
    if cfg["k2"]:
        s += ".p2align 6\n" + desc(K2, k2info["vgpr"], k2info["accum"])
    return s, errs

if __name__ == "__main__":
    cfg = dict(DEF)
    out = sys.argv[1]
    for a in sys.argv[2:]:
        k, v = a.split("=", 1)
        cfg[k] = json.loads(v)
    s, errs = build(cfg)
    for e in errs[:40]: sys.stderr.write("HAZARD " + e + "\n")
    open(out, "w").write(s)
    sys.stderr.write(f"wrote {out} {len(s)} bytes, {len(errs)} hazards\n")
```

```python
import sys
src, dst, tgt, off, stride = sys.argv[1], sys.argv[2], sys.argv[3], int(sys.argv[4], 0), int(sys.argv[5], 0)
amp = int(sys.argv[6]) if len(sys.argv) > 6 else 20
s = open(src).read()
b = ["s_cmp_ge_u32 s2, 1", "s_cbranch_scc1 P_END", "s_load_dwordx2 s[20:21], s[0:1], 88"]
if tgt == "code":
    b += ["s_getpc_b64 s[4:5]", "PCW:", f"s_sub_u32 s4, s4, PCW-M29_A-{off}", "s_subb_u32 s5, s5, 0", "s_waitcnt lgkmcnt(0)",
          "v_mov_b32 v2, 0", "v_mov_b32 v3, 0"]
    ld = lambda: ["v_lshl_add_u64 v[4:5], v[2:3], 0, s[4:5]", "global_load_dword v6, v[4:5], off", "s_waitcnt vmcnt(0)"]
else:
    b += [f"s_load_dwordx2 s[4:5], s[0:1], {int(tgt)*8}", "s_waitcnt lgkmcnt(0)", f"s_mov_b32 s6, {off + 10*stride}", "s_mov_b32 s7, 0x20000", f"v_mov_b32 v2, {off}"]
    ld = lambda: ["buffer_load_dword v6, v2, s[4:7], 0 offen", "s_waitcnt vmcnt(0)"]
b += ["s_mov_b32 s22, 256", "s_mov_b32 s23, 0x20000"]
b += ld() + ["s_memrealtime s[8:9]", "s_waitcnt lgkmcnt(0)"]
for i in range(8): b += [f"v_add_u32 v2, {stride}, v2"] + ld()
b += ["s_memrealtime s[10:11]", "s_waitcnt lgkmcnt(0)", "s_sub_u32 s12, s10, s8", f"s_mul_i32 s13, s12, {amp}", "s_min_u32 s13, s13, 30000",
      "PSPIN:", "s_memrealtime s[14:15]", "s_waitcnt lgkmcnt(0)", "s_sub_u32 s16, s14, s10", "s_cmp_lt_u32 s16, s13", "s_cbranch_scc1 PSPIN",
      "v_mov_b32 v7, s12", "v_mov_b32 v8, 0", "buffer_store_dword v7, v8, s[20:23], 0 offen", "s_waitcnt vmcnt(0)", "P_END:", "s_endpgm"]
k = ".globl probe_kernel\n.p2align 8\n.type probe_kernel,@function\nprobe_kernel:\n" + "\n".join(b) + "\n"
s = s.replace("; @launch kernel=concat", "; @launch kernel=probe_kernel grid=(1,1,1) block=(64,1,1) lds=0\n; @launch kernel=concat", 1)
s = s.replace('.section .rodata,"a"', k + '.section .rodata,"a"', 1)
s += """.p2align 6
.amdhsa_kernel probe_kernel
  .amdhsa_next_free_vgpr 16
  .amdhsa_next_free_sgpr 32
  .amdhsa_accum_offset 16
  .amdhsa_group_segment_fixed_size 0
  .amdhsa_kernarg_size 104
  .amdhsa_user_sgpr_count 2
  .amdhsa_user_sgpr_kernarg_segment_ptr 1
  .amdhsa_system_sgpr_workgroup_id_x 1
.end_amdhsa_kernel
"""
open(dst, "w").write(s)
```

```python
import sys
src, dst, i, j, mul, sh = sys.argv[1], sys.argv[2], int(sys.argv[3]), int(sys.argv[4]), int(sys.argv[5]), int(sys.argv[6])
sub = int(sys.argv[7]) if len(sys.argv) > 7 else 0
s = open(src).read()
b = ["s_cmp_ge_u32 s2, 1", "s_cbranch_scc1 P_END", "s_load_dwordx2 s[20:21], s[0:1], 88", "s_load_dwordx2 s[4:5], s[0:1], 96", "s_waitcnt lgkmcnt(0)",
     "s_add_u32 s4, s4, 0x10000000", "s_addc_u32 s5, s5, 0", "s_mov_b32 s6, 0x100000", "s_mov_b32 s7, 0x20000",
     "s_mov_b32 s22, 256", "s_mov_b32 s23, 0x20000", "v_mul_u32_u24 v2, 1728, v0",
     f"buffer_load_dword v3, v2, s[4:7], 0 offen offset:{4*i}", f"buffer_load_dword v4, v2, s[4:7], 0 offen offset:{4*j}", "s_waitcnt vmcnt(0)",
     "v_sub_u32 v3, v4, v3", "s_mov_b32 s12, 0", "s_nop 4"]
for l in range(16): b += [f"v_readlane_b32 s13, v3, {l}", "s_nop 4", "s_add_u32 s12, s12, s13"]
b += ["s_lshr_b32 s12, s12, 4", f"s_max_u32 s12, s12, {sub}", f"s_sub_u32 s12, s12, {sub}", f"s_mul_i32 s13, s12, {mul}", f"s_lshr_b32 s13, s13, {sh}", "s_min_u32 s13, s13, 30000",
      "s_memrealtime s[10:11]", "s_waitcnt lgkmcnt(0)",
      "PSPIN:", "s_memrealtime s[14:15]", "s_waitcnt lgkmcnt(0)", "s_sub_u32 s16, s14, s10", "s_cmp_lt_u32 s16, s13", "s_cbranch_scc1 PSPIN",
      "v_mov_b32 v7, s12", "v_mov_b32 v8, 0", "buffer_store_dword v7, v8, s[20:23], 0 offen", "s_waitcnt vmcnt(0)", "P_END:", "s_endpgm"]
k = ".globl post_kernel\n.p2align 8\n.type post_kernel,@function\npost_kernel:\n" + "\n".join(b) + "\n"
s = s.replace(".amdgcn_target", "; @launch kernel=post_kernel grid=(1,1,1) block=(64,1,1) lds=0\n.amdgcn_target", 1)
s = s.replace('.section .rodata,"a"', k + '.section .rodata,"a"', 1)
s += """.p2align 6
.amdhsa_kernel post_kernel
  .amdhsa_next_free_vgpr 16
  .amdhsa_next_free_sgpr 32
  .amdhsa_accum_offset 16
  .amdhsa_group_segment_fixed_size 0
  .amdhsa_kernarg_size 104
  .amdhsa_user_sgpr_count 2
  .amdhsa_user_sgpr_kernarg_segment_ptr 1
  .amdhsa_system_sgpr_workgroup_id_x 1
.end_amdhsa_kernel
"""
open(dst, "w").write(s)
```
